```python
import torch

def _softmax(x, axis=-1):
    return torch.softmax(x, dim=axis)
def _gelu(x):
    return torch.nn.functional.gelu(x, approximate="tanh")
def _silu(x):
    return torch.nn.functional.silu(x)
def _sigmoid(x):
    return torch.sigmoid(x)
def _layernorm(x, axis=-1, eps=1e-5):
    m = x.mean(dim=axis, keepdim=True)
    v = x.var(dim=axis, keepdim=True, unbiased=False)
    return (x - m) / torch.sqrt(v + eps)
def _scatter_add(tgt, idx, src, axis=0):
    return tgt.clone().index_add_(axis, idx, src)
def _segment_sum(src, seg, n):
    out = torch.zeros((n,) + src.shape[1:], dtype=src.dtype)
    return out.index_add_(0, seg, src)
def _pad(x, pw):
    flat = tuple(v for pair in reversed(pw) for v in pair)
    return torch.nn.functional.pad(x, flat)

kernel_name = 'sequential_preLN__spectral_gfnet__dense_activation_squared_relu__prompt'

def setup_inputs():

    _w = (lambda a: (lambda t: t.to(torch.bfloat16) if t.is_floating_point() else t)(torch.as_tensor(a)))
    def _A_setup():
        B, S, D = 1, 2048, 640
        Df = D // 2 + 1
        return {
            "x": _w((lambda *s: torch.randn(*s, dtype=torch.bfloat16) * 0.05)(B, S, D)),
            "w_r": _w((lambda *s: torch.randn(*s, dtype=torch.bfloat16) * 0.4)(S, Df) * 0.02),
            "w_i": _w((lambda *s: torch.randn(*s, dtype=torch.bfloat16) * 0.4)(S, Df) * 0.02),
        }
    _A_in = _A_setup()

    def _B_setup():
        B, S, D, F = 1, 2048, 640, 1536
        return {
            "x": _w((lambda *s: torch.randn(*s, dtype=torch.bfloat16) * 0.05)(B, S, D)),
            "w1": _w((lambda *s: torch.randn(*s, dtype=torch.bfloat16) * 0.05)(D, F)),
            "b1": _w((lambda *s: torch.randn(*s, dtype=torch.bfloat16) * 0.2)(F)),
            "w2": _w((lambda *s: torch.randn(*s, dtype=torch.bfloat16) * 0.05)(F, D)),
            "b2": _w((lambda *s: torch.randn(*s, dtype=torch.bfloat16) * 1.6)(D)),
        }
    _B_in = _B_setup()

    return {
        "A_x": _A_in["x"],
        "A_w_r": _A_in["w_r"],
        "A_w_i": _A_in["w_i"],
        "B_x": _B_in["x"],
        "B_w1": _B_in["w1"],
        "B_b1": _B_in["b1"],
        "B_w2": _B_in["w2"],
        "B_b2": _B_in["b2"],
    }

def reference(A_x, A_w_r, A_w_i, B_x, B_w1, B_b1, B_w2, B_b2):
    def _A_ref(x, w_r, w_i):
        B, S, D = x.shape
        X = (lambda x, axes=(-2,-1): torch.fft.rfft2(x.float(), dim=axes))(x, axes=(-2, -1))
        W = w_r + 1j * w_i
        X = X * W
        y = (lambda x, s, axes=(-2,-1): torch.fft.irfft2(x, s=s, dim=axes).to(torch.bfloat16))(X, (S, D), axes=(-2, -1))
        return y

    def _B_ref(x, w1, b1, w2, b2):
        h = torch.einsum("bsd,df->bsf", x, w1) + b1
        zero = torch.zeros_like(h)
        r = torch.where(h > zero, h, zero)
        h = r * r
        out = torch.einsum("bsf,fd->bsd", h, w2) + b2
        return out

    x = A_x
    h = x + _A_ref(_layernorm(x, axis=-1), A_w_r, A_w_i)
    h2 = h + _B_ref(_layernorm(h, axis=-1), B_w1, B_b1, B_w2, B_b2)
    return h2
```

```python
import re, math, struct

TRANS = ('v_exp_f32','v_log_f32','v_rcp_f32','v_rsq_f32','v_sqrt_f32','v_sin_f32','v_cos_f32','v_rcp_iflag_f32')

def _regs(tok):
    tok = tok.strip()
    tok = re.sub(r'^-', '', tok)
    m = re.match(r'^abs\((.*)\)$', tok)
    if m: tok = m.group(1)
    tok = re.sub(r'^\|(.*)\|$', r'\1', tok)
    m = re.match(r'^([vsa])(\d+)$', tok)
    if m: return {(m.group(1), int(m.group(2)))}
    m = re.match(r'^([vsa])\[(\d+):(\d+)\]$', tok)
    if m: return {(m.group(1), i) for i in range(int(m.group(2)), int(m.group(3))+1)}
    if tok in ('vcc','vcc_lo','vcc_hi'): return {('vcc',0)}
    if tok in ('exec','exec_lo','exec_hi'): return {('exec',0)}
    if tok == 'm0': return {('m0',0)}
    return set()

class Ins:
    __slots__=('text','op','kind','wr','rd','dpp','states','isstore_wide','storedata','passes','srcC','srcAB','lanesel')

def parse(text):
    t = text.split(';')[0].strip()
    i = Ins(); i.text = text
    parts = t.split(None,1)
    op = parts[0]; i.op = op
    rest = parts[1] if len(parts)>1 else ''
    ops=[]; cur=''; depth=0
    for ch in rest:
        if ch=='[': depth+=1
        if ch==']': depth-=1
        if ch==',' and depth==0: ops.append(cur); cur=''
        else: cur+=ch
    if cur.strip(): ops.append(cur)
    mods=''
    if ops:
        last=ops[-1].strip()
        m=re.match(r'^(\S+)(.*)$', last)
        ops[-1]=m.group(1); mods=m.group(2)
    ops=[o.strip() for o in ops]
    i.dpp = ('quad_perm' in mods or 'row_' in mods or 'wave_' in mods) or op.endswith('_dpp')
    i.states=1; i.isstore_wide=False; i.storedata=set(); i.passes=0; i.srcC=set(); i.srcAB=set(); i.lanesel=set()
    wr=set(); rd=set()
    if op=='s_nop':
        i.kind='nop'; i.states=int(ops[0],0)+1
    elif op.startswith('v_mfma') or op.startswith('v_smfmac'):
        i.kind='mfma'
        wr=_regs(ops[0]); i.srcAB=_regs(ops[1])|_regs(ops[2]); i.srcC=_regs(ops[3]); rd=i.srcAB|i.srcC
        if '32x32x16' in op or '32x32x8' in op: i.passes=8
        elif '16x16x32' in op or '16x16x16' in op: i.passes=4
        else: i.passes=16
    elif op.startswith('v_'):
        i.kind='trans' if op.replace('_e32','').replace('_e64','') in TRANS else 'valu'
        if op.startswith('v_cmp'):
            wr=_regs(ops[0]); rd=set().union(*[_regs(o) for o in ops[1:]])
            if op.startswith('v_cmpx'): wr|={('exec',0)}
        elif op.startswith('v_readlane') or op.startswith('v_readfirstlane'):
            wr=_regs(ops[0]); rd=_regs(ops[1])
            if len(ops)>2: i.lanesel=_regs(ops[2]); rd|=i.lanesel
            i.kind='readlane'
        elif '_co_' in op:
            wr=_regs(ops[0])|_regs(ops[1]); rd=set().union(*[_regs(o) for o in ops[2:]])
        elif op.startswith('v_permlane'):
            wr=_regs(ops[0])|_regs(ops[1]); rd=wr.copy(); i.kind='permlane'
        else:
            wr=_regs(ops[0]); rd=set().union(*[_regs(o) for o in ops[1:]]) if len(ops)>1 else set()
            if op.startswith('v_fmac') or op.startswith('v_pk_fmac') or 'd16' in op: rd|=wr
            if op.startswith('v_cndmask') and len(ops)==3: rd|={('vcc',0)}
            if op.startswith('v_div_fmas'): rd|={('vcc',0)}
    elif op.startswith('buffer_') or op.startswith('global_') or op.startswith('flat_'):
        i.kind='vmem'
        if 'store' in op or 'atomic' in op:
            rd=set().union(*[_regs(o) for o in ops])
            data = _regs(ops[0]) if op.startswith('buffer_') else _regs(ops[1])
            i.storedata=data
            if 'x3' in op or 'x4' in op: i.isstore_wide=True
        else:
            if ' lds' in (' '+mods) :
                rd=set().union(*[_regs(o) for o in ops])|{('m0',0)}
                i.kind='vmem_lds'
            else:
                wr=_regs(ops[0]); rd=set().union(*[_regs(o) for o in ops[1:]])
                if 'd16' in op: rd|=wr
    elif op.startswith('ds_'):
        i.kind='ds'
        if 'write' in op:
            rd=set().union(*[_regs(o) for o in ops])
        else:
            wr=_regs(ops[0]); rd=set().union(*[_regs(o) for o in ops[1:]])
            if 'd16' in op: rd|=wr
    elif op.startswith('s_'):
        i.kind='salu'
        if op.startswith('s_cmp') or op.startswith('s_cbranch') or op in('s_branch','s_barrier','s_waitcnt','s_endpgm','s_setprio','s_sleep'):
            rd=set().union(*[_regs(o) for o in ops]) if ops else set()
        else:
            wr=_regs(ops[0]) if ops else set(); rd=set().union(*[_regs(o) for o in ops[1:]]) if len(ops)>1 else set()
            if 'saveexec' in op: wr|={('exec',0)}
    else:
        i.kind='other'
    i.wr=wr; i.rd=rd
    return i

def need(prod, cons):
    n=0
    pv = prod.kind in ('valu','trans','readlane','permlane')
    cvalu = cons.kind in ('valu','trans','readlane','permlane')
    if pv:
        vw={r for r in prod.wr if r[0] in('v','a')}
        sw={r for r in prod.wr if r[0] in('s','vcc')}
        if vw & cons.rd:
            if cons.dpp: n=max(n,2)
            if cons.kind=='readlane': n=max(n,1)
            if cons.kind=='permlane': n=max(n,2)
            if cons.kind=='mfma': n=max(n,2)
            if prod.kind=='trans' and cons.kind!='trans' : n=max(n,1)
        if sw & cons.rd:
            if cvalu or cons.kind=='mfma': n=max(n,2)
            if cons.kind in('vmem','vmem_lds'): n=max(n,5)
            if sw & cons.lanesel: n=max(n,4)
            if cons.op.startswith('v_div_fmas'): n=max(n,4)
        if ('exec',0) in prod.wr:
            n=max(n,5)
    if prod.kind=='salu' and ('m0',0) in prod.wr and cons.kind=='vmem_lds': n=max(n,1)
    if prod.kind=='vmem' and prod.isstore_wide and (prod.storedata & cons.wr):
        n=max(n,2)
    if prod.kind=='mfma':
        P=prod.passes
        tab={2:0,4:1,8:2,16:3}[P]
        if cons.kind=='mfma':
            if prod.wr & cons.srcAB: n=max(n,[5,8,12,20][tab])
            if prod.wr & cons.srcC:
                if prod.wr==cons.srcC and cons.passes==P: n=max(n,[2,0,0,0][tab])
                else: n=max(n,[4,6,10,18][tab])
            elif prod.wr & cons.wr: n=max(n,[4,6,10,18][tab])
        else:
            if (prod.wr & cons.rd) or (prod.wr & cons.wr): n=max(n,[5,8,12,20][tab])
            if cvalu and (prod.srcC & cons.wr): n=max(n,[1,3,7,15][tab])
    return n

class Asm:
    def __init__(self):
        self.out=[]
        self.hist=[]
        self.pos=0
    def raw(self, s): self.out.append(s)
    def label(self, l):
        self.out.append(l+':')
    def flush_hazards(self, n=0):
        self.hist=[]
    def __call__(self, text):
        for line in text.strip().split('\n'):
            line=line.strip()
            if not line or line.startswith(';'):
                if line: self.out.append('    '+line)
                continue
            ins=parse(line)
            req=0
            for (p,pi) in self.hist:
                nn=need(pi,ins)
                if nn:
                    dist=self.pos-p-1
                    req=max(req,nn-dist)
            while req>0:
                k=min(req,16)
                self.out.append('    s_nop %d'%(k-1)); self.pos+=k; req-=k
            self.out.append('    '+line)
            self.hist.append((self.pos+ins.states-1,ins)); self.pos+=ins.states
            self.hist=[(p,i) for (p,i) in self.hist if self.pos-p<=24]
    def text(self): return '\n'.join(self.out)+'\n'

class Pool:
    def __init__(self, lo, hi):
        self.free=set(range(lo,hi)); self.hi=lo; self.lo=lo
    def alloc(self, n=1, align=1):
        for b in sorted(self.free):
            if b%align: continue
            if all((b+i) in self.free for i in range(n)):
                for i in range(n): self.free.discard(b+i)
                self.hi=max(self.hi,b+n)
                return b
        raise RuntimeError('out of registers')
    def rel(self, b, n=1):
        for i in range(n):
            assert (b+i) not in self.free, ('double free',b+i)
            self.free.add(b+i)

def f2u(x): return struct.unpack('<I',struct.pack('<f',x))[0]

class R:
    __slots__=('r','s')
    def __init__(self,r,s=1): self.r=r; self.s=s
    def neg(self): return R(self.r,-self.s)
    def op(self): return ('-' if self.s<0 else '')+'v%d'%self.r
class C:
    __slots__=('re','im')
    def __init__(self,re,im): self.re=re; self.im=im
    def mul_i(self):
        return C(self.im.neg(), self.re)
    def mul_mi(self):
        return C(self.im, self.re.neg())
    def neg(self): return C(self.re.neg(), self.im.neg())

class FFTGen:
    def __init__(self, a, pool):
        self.a=a; self.p=pool
    def radd(self,x,y,dst=None):
        d=self.p.alloc() if dst is None else dst
        if x.s==y.s:
            self.a('v_add_f32 v%d, v%d, v%d'%(d,x.r,y.r)); return R(d,x.s)
        if x.s>0: self.a('v_sub_f32 v%d, v%d, v%d'%(d,x.r,y.r))
        else: self.a('v_sub_f32 v%d, v%d, v%d'%(d,y.r,x.r))
        return R(d,1)
    def cadd(self,x,y): return C(self.radd(x.re,y.re), self.radd(x.im,y.im))
    def csub(self,x,y): return self.cadd(x,y.neg())
    def relc(self,x):
        self.p.rel(x.re.r); self.p.rel(x.im.r)
    def bfly(self,x,y):
        s=self.cadd(x,y); d=self.csub(x,y); self.relc(x); self.relc(y); return s,d
    def rmuls(self,x,sreg,dst=None):
        d=self.p.alloc() if dst is None else dst
        self.a('v_mul_f32 v%d, %s, v%d'%(d,sreg,x.r)); return R(d,x.s)
    def rot8(self,x,k,inv,sq):
        a_,b_=x.re,x.im
        if inv: kk={1:7,3:5}[k]
        else: kk=k
        if kk==1: re=self.radd(a_,b_); im=self.radd(b_,a_.neg())
        elif kk==3: re=self.radd(b_,a_.neg()); im=self.radd(a_.neg(),b_.neg())
        elif kk==7:
            re=self.radd(a_,b_.neg()); im=self.radd(a_,b_)
        elif kk==5:
            re=self.radd(a_.neg(),b_.neg()); im=self.radd(a_,b_.neg())
        self.relc(x)
        re2=self.rmuls(re,sq,dst=re.r); im2=self.rmuls(im,sq,dst=im.r)
        return C(re2,im2)
    def dft4(self,x,inv):
        a,b=self.bfly(x[0],x[2]); c,d=self.bfly(x[1],x[3])
        d = d.mul_i() if inv else d.mul_mi()
        y0,y2=self.bfly(a,c); y1,y3=self.bfly(b,d)
        return [y0,y1,y2,y3]
    def dft8(self,x,inv,sq):
        e=[];o=[]
        for j in range(4):
            s,d=self.bfly(x[j],x[j+4]); e.append(s); o.append(d)
        o[1]=self.rot8(o[1],1,inv,sq)
        o[2]=o[2].mul_i() if inv else o[2].mul_mi()
        o[3]=self.rot8(o[3],3,inv,sq)
        E=self.dft4(e,inv); O=self.dft4(o,inv)
        y=[None]*8
        for k in range(4): y[2*k]=E[k]; y[2*k+1]=O[k]
        return y
    def rfma(self,x,sreg,y,dst=None):
        d=self.p.alloc() if dst is None else dst
        self.a('v_fma_f32 v%d, %s, %s, %s'%(d,x.op(),sreg,y.op())); return R(d,1)
    def dft5(self,x,inv,k):
        t1=self.cadd(x[1],x[4]); t4=self.csub(x[1],x[4])
        t2=self.cadd(x[2],x[3]); t3=self.csub(x[2],x[3])
        self.relc(x[1]);self.relc(x[2]);self.relc(x[3]);self.relc(x[4])
        s=self.cadd(t1,t2); y0=self.cadd(x[0],s); self.relc(s)
        def lin(x0,p,cp,q,cq):
            out=[]
            for comp in ('re','im'):
                r=self.rfma(getattr(p,comp),cp,getattr(x0,comp))
                r=self.rfma(getattr(q,comp),cq,r,dst=r.r)
                out.append(r)
            return C(out[0],out[1])
        a1=lin(x[0],t1,k['c1'],t2,k['c2']); a2=lin(x[0],t1,k['c2'],t2,k['c1'])
        self.relc(x[0]); self.relc(t1); self.relc(t2)
        def lin2(p,cp,q,cq,sg):
            out=[]
            for comp in ('re','im'):
                r=self.rmuls(getattr(p,comp),cp)
                qq=getattr(q,comp); qq=qq if sg>0 else qq.neg()
                r2=self.rfma(qq,cq,r,dst=r.r)
                out.append(r2)
            return C(out[0],out[1])
        b1=lin2(t4,k['s1'],t3,k['s2'],1); b2=lin2(t4,k['s2'],t3,k['s1'],-1)
        self.relc(t4); self.relc(t3)
        ib1=b1.mul_i(); ib2=b2.mul_i()
        if not inv:
            y1=self.csub(a1,ib1); y4=self.cadd(a1,ib1); y2=self.csub(a2,ib2); y3=self.cadd(a2,ib2)
        else:
            y1=self.cadd(a1,ib1); y4=self.csub(a1,ib1); y2=self.cadd(a2,ib2); y3=self.csub(a2,ib2)
        self.relc(a1);self.relc(a2);self.relc(b1);self.relc(b2)
        return [y0,y1,y2,y3,y4]
    def dft10(self,x,inv,k):
        t=[self.dft5([x[(5*n1+2*n2)%10] for n2 in range(5)],inv,k) for n1 in range(2)]
        y=[None]*10
        for k2 in range(5):
            s,d=self.bfly(t[0][k2],t[1][k2])
            y[(6*k2)%10]=s; y[(5+6*k2)%10]=d
        return y
    def cmul_tw(self,x,tr,ti,conj,dst=None):
        d=self.p.alloc(2,2) if dst is None else dst
        a_,b_=x.re,x.im
        tis = '-v%d'%ti if conj else 'v%d'%ti
        ntis = 'v%d'%ti if conj else '-v%d'%ti
        self.a('v_mul_f32 v%d, %s, v%d'%(d, a_.op(), tr) if a_.s>0 else 'v_mul_f32_e64 v%d, %s, v%d'%(d,a_.op(),tr))
        self.a('v_mul_f32_e64 v%d, %s, %s'%(d+1, a_.op(), tis))
        self.a('v_fma_f32 v%d, %s, %s, v%d'%(d, b_.op(), ntis, d))
        self.a('v_fma_f32 v%d, %s, v%d, v%d'%(d+1, b_.op(), tr, d+1))
        self.relc(x)
        return C(R(d),R(d+1))
    def topair(self,x,dst=None):
        d=self.p.alloc(2,2) if dst is None else dst
        for c,dd in ((x.re,d),(x.im,d+1)):
            if c.s>0: self.a('v_mov_b32 v%d, v%d'%(dd,c.r))
            else: self.a('v_sub_f32 v%d, 0, v%d'%(dd,c.r))
        self.relc(x)
        return C(R(d),R(d+1))
```

```python
import numpy as np, sys
from asmlib import *

NAME='sequential_preLN__spectral_gfnet__dense_activation_squared_relu__prompt'

XF_OFF   = 0
XF_BLK   = 321*64
WT_OFF   = 5*1024*1024+256*1024
H_OFF    = 8*1024*1024
NRM_OFF  = 11*1024*1024
W1T_OFF  = 14*1024*1024
W2T_OFF  = 16*1024*1024
ACT_OFF  = 18*1024*1024
WS_SIZE  = 25*1024*1024
assert XF_BLK*256 <= WT_OFF and WT_OFF+321*8192<=H_OFF

def Wc(N,e):
    return np.exp(-2j*np.pi*(e%N)/N)
tab=[]
def add_table(rows, nq, f):
    off=len(tab)*4
    for q in range(nq):
        for r in range(rows):
            for e in range(2):
                w=f(r,2*q+e); tab.append(np.float32(w.real)); tab.append(np.float32(w.imag))
    return off
RT1=add_table(80,4,lambda i,k:Wc(640,i*k))
RT2=add_table(10,4,lambda u,k:Wc(80,u*k))
CT1=add_table(256,4,lambda t,k:Wc(2048,t*k))
CT2=add_table(32,4,lambda u,k:Wc(256,u*k))
CT3=add_table(4,4,lambda v,k:Wc(32,v*k))
TAB_BYTES=len(tab)*4

SQ=f2u(np.float32(np.sqrt(0.5)))
C1=f2u(np.float32(np.cos(2*np.pi/5))); C2=f2u(np.float32(np.cos(4*np.pi/5)))
S1=f2u(np.float32(np.sin(2*np.pi/5))); S2=f2u(np.float32(np.sin(4*np.pi/5)))

kernels=[]
launches=[]

def srd(a, d, base, size):
    a('s_mov_b32 s%d, s%d'%(d,base)); a('s_and_b32 s%d, s%d, 0xffff'%(d+1,base+1))
    a('s_mov_b32 s%d, 0x%x'%(d+2,size)); a('s_mov_b32 s%d, 0x00020000'%(d+3))

def table_srd(a, d, tag):
    a('s_getpc_b64 s[%d:%d]'%(d,d+1))
    a.raw('.Lpc_%s:'%tag)
    a('s_add_u32 s%d, s%d, (twiddle_table - .Lpc_%s)'%(d,d,tag))
    a('s_addc_u32 s%d, s%d, 0'%(d+1,d+1))
    a('s_and_b32 s%d, s%d, 0xffff'%(d+1,d+1))
    a('s_mov_b32 s%d, %d'%(d+2,TAB_BYTES)); a('s_mov_b32 s%d, 0x00020000'%(d+3))

def load_tw(a, pool, vaddr, tab_off, rows, stab):
    b=pool.alloc(16,4)
    for q in range(4):
        off=tab_off+q*rows*16
        if off<4096:
            a('buffer_load_dwordx4 v[%d:%d], v%d, s[%d:%d], 0 offen offset:%d'%(b+4*q,b+4*q+3,vaddr,stab,stab+3,off))
        else:
            a('s_mov_b32 s99, %d'%off)
            a('buffer_load_dwordx4 v[%d:%d], v%d, s[%d:%d], s99 offen'%(b+4*q,b+4*q+3,vaddr,stab,stab+3))
    return b

def wave_allreduce(a, pool, regs, stmp):
    pats=['quad_perm:[1,0,3,2]','quad_perm:[2,3,0,1]','row_half_mirror','row_mirror']
    for p in pats:
        for r in regs:
            a('v_add_f32_dpp v%d, v%d, v%d %s row_mask:0xf bank_mask:0xf'%(r,r,r,p))
    for n,r in enumerate(regs):
        for q in range(4):
            a('v_readlane_b32 s%d, v%d, %d'%(stmp+4*n+q,r,16*q))
    for n,r in enumerate(regs):
        s=stmp+4*n
        a('v_mov_b32 v%d, s%d'%(r,s))
        a('v_add_f32 v%d, s%d, v%d'%(r,s+1,r))
        t=pool.alloc()
        a('v_mov_b32 v%d, s%d'%(t,s+2))
        a('v_add_f32 v%d, s%d, v%d'%(t,s+3,t))
        a('v_add_f32 v%d, v%d, v%d'%(r,r,t))
        pool.rel(t)

def bf16r(a, dst, src):
    a('v_cvt_pk_bf16_f32 v%d, v%d, v%d'%(dst,src,src))
    a('v_lshlrev_b32 v%d, 16, v%d'%(dst,dst))

def layernorm_rows(a, pool, rows, s_inv640, s_640, stmp):
    sums=[]
    for x in rows:
        s=pool.alloc()
        a('v_add_f32 v%d, v%d, v%d'%(s,x[0],x[1]))
        for r in x[2:]: a('v_add_f32 v%d, v%d, v%d'%(s,s,r))
        sums.append(s)
    wave_allreduce(a,pool,sums,stmp)
    means=[]
    for s in sums:
        q=pool.alloc(); r=pool.alloc()
        a('v_mul_f32 v%d, %s, v%d'%(q,s_inv640,s))
        a('v_fma_f32 v%d, -v%d, %s, v%d'%(r,q,s_640,s))
        a('v_fma_f32 v%d, v%d, %s, v%d'%(q,r,s_inv640,q))
        pool.rel(r); pool.rel(s); means.append(q)
    vs=[]
    for x,m in zip(rows,means):
        s=pool.alloc(); t=pool.alloc()
        for n,r in enumerate(x):
            a('v_sub_f32 v%d, v%d, v%d'%(t,r,m))
            if n==0: a('v_mul_f32 v%d, v%d, v%d'%(s,t,t))
            else: a('v_fmac_f32 v%d, v%d, v%d'%(s,t,t))
        pool.rel(t); vs.append(s)
    wave_allreduce(a,pool,vs,stmp)
    for x,m,s in zip(rows,means,vs):
        q=pool.alloc(); r=pool.alloc()
        a('v_mul_f32 v%d, %s, v%d'%(q,s_inv640,s))
        a('v_fma_f32 v%d, -v%d, %s, v%d'%(r,q,s_640,s))
        a('v_fma_f32 v%d, v%d, %s, v%d'%(q,r,s_inv640,q))
        bf16r(a,q,q)
        a('v_add_f32 v%d, 0x%x, v%d'%(q,f2u(np.float32(1e-5)),q))
        bf16r(a,q,q)
        a('v_sqrt_f32 v%d, v%d'%(q,q))
        bf16r(a,q,q)
        a('v_rcp_f32 v%d, v%d'%(q,q))
        bf16r(a,m,m)
        for n in range(0,len(x),2):
            r0,r1=x[n],x[n+1]
            a('v_sub_f32 v%d, v%d, v%d'%(r0,r0,m)); a('v_sub_f32 v%d, v%d, v%d'%(r1,r1,m))
            a('v_cvt_pk_bf16_f32 v%d, v%d, v%d'%(r,r0,r1))
            a('v_lshlrev_b32 v%d, 16, v%d'%(r0,r)); a('v_and_b32 v%d, 0xffff0000, v%d'%(r1,r))
            a('v_mul_f32 v%d, v%d, v%d'%(r0,r0,q)); a('v_mul_f32 v%d, v%d, v%d'%(r1,r1,q))
            a('v_cvt_pk_bf16_f32 v%d, v%d, v%d'%(r,r0,r1))
            a('v_lshlrev_b32 v%d, 16, v%d'%(r0,r)); a('v_and_b32 v%d, 0xffff0000, v%d'%(r1,r))
        pool.rel(q); pool.rel(r); pool.rel(m); pool.rel(s)

def lds_read_c(a,pool,vaddr,offs):
    xs=[]
    for o in offs:
        b=pool.alloc(2,2)
        a('ds_read_b64 v[%d:%d], v%d offset:%d'%(b,b+1,vaddr,o))
        xs.append(C(R(b),R(b+1)))
    return xs
def lds_write_c(a,pool,g,vaddr,off,x):
    assert x.re.s>0 and x.im.s>0 and x.im.r==x.re.r+1 and x.re.r%2==0
    a('ds_write_b64 v%d, v[%d:%d] offset:%d'%(vaddr,x.re.r,x.im.r,off))
    g.relc(x)

def setup_consts(a):
    a('s_mov_b32 s60, 0x%x'%SQ); a('s_mov_b32 s61, 0x%x'%C1); a('s_mov_b32 s62, 0x%x'%C2)
    a('s_mov_b32 s63, 0x%x'%S1); a('s_mov_b32 s64, 0x%x'%S2)
    a('s_mov_b32 s68, 0x07060302'); a('s_mov_b32 s65, 0x%x'%f2u(np.float32(1/640.))); a('s_mov_b32 s66, 0x%x'%f2u(640.0))
K5={'c1':'s61','c2':'s62','s1':'s63','s2':'s64'}
L0=0; L1=22528; ROW_LDS=L1+27136

def row_thread_ids(a,pool):
    p=pool.alloc(); i=pool.alloc(); k1=pool.alloc(); u=pool.alloc()
    a('v_mul_u32_u24 v%d, 205, v0'%p); a('v_lshrrev_b32 v%d, 14, v%d'%(p,p))
    a('v_mul_u32_u24 v%d, 80, v%d'%(i,p)); a('v_sub_u32 v%d, v0, v%d'%(i,i))
    a('v_mul_u32_u24 v%d, 205, v%d'%(k1,i)); a('v_lshrrev_b32 v%d, 11, v%d'%(k1,k1))
    a('v_mul_u32_u24 v%d, 10, v%d'%(u,k1)); a('v_sub_u32 v%d, v%d, v%d'%(u,i,u))
    return p,i,k1,u

def gen_k1():
    a=Asm(); pool=Pool(1,128); g=FFTGen(a,pool)
    a('s_cmp_ge_u32 s2, 384'); a('s_cbranch_scc1 .Lk1_end')
    a('s_load_dwordx8 s[16:23], s[0:1], 0')
    a('s_load_dwordx2 s[24:25], s[0:1], 80')
    table_srd(a,44,'k1')
    setup_consts(a)
    a('v_lshrrev_b32 v1, 6, v0')
    a('s_waitcnt lgkmcnt(0)')
    a('v_readfirstlane_b32 s3, v1')
    srd(a,40,24,WS_SIZE)
    a('s_cmp_ge_u32 s2, 256'); a('s_cbranch_scc1 .Lk1_wt')
    srd(a,36,16,2048*1280)
    p,i,k1,u=row_thread_ids(a,pool)
    t=pool.alloc()
    a('v_lshlrev_b32 v%d, 4, v%d'%(t,i)); tw1=load_tw(a,pool,t,RT1,80,44)
    a('v_lshlrev_b32 v%d, 4, v%d'%(t,u)); tw2=load_tw(a,pool,t,RT2,10,44)
    pool.rel(t)
    a('s_cmp_ge_u32 s3, 4'); a('s_cbranch_scc1 .Lk1_b0')
    lane=pool.alloc(); va=pool.alloc()
    a('v_and_b32 v%d, 63, v0'%lane)
    a('s_lshl_b32 s4, s2, 3'); a('s_lshl_b32 s5, s3, 1'); a('s_add_u32 s4, s4, s5'); a('s_mul_i32 s4, s4, 1280')
    a('v_mul_u32_u24 v%d, 20, v%d'%(va,lane))
    raw=pool.alloc(12,4)
    a('buffer_load_dwordx4 v[%d:%d], v%d, s[36:39], s4 offen'%(raw,raw+3,va))
    a('buffer_load_dword v%d, v%d, s[36:39], s4 offen offset:16'%(raw+4,va))
    a('buffer_load_dwordx4 v[%d:%d], v%d, s[36:39], s4 offen offset:1280'%(raw+8,raw+11,va))
    a('buffer_load_dword v%d, v%d, s[36:39], s4 offen offset:1296'%(raw+5,va))
    xs=pool.alloc(20,4)
    a('s_waitcnt vmcnt(0)')
    srcA=[raw,raw+1,raw+2,raw+3,raw+4]; srcB=[raw+8,raw+9,raw+10,raw+11,raw+5]
    for d in range(5):
        a('v_lshlrev_b32 v%d, 16, v%d'%(xs+4*d,srcA[d])); a('v_and_b32 v%d, 0xffff0000, v%d'%(xs+4*d+2,srcA[d]))
        a('v_lshlrev_b32 v%d, 16, v%d'%(xs+4*d+1,srcB[d])); a('v_and_b32 v%d, 0xffff0000, v%d'%(xs+4*d+3,srcB[d]))
    pool.rel(raw,12)
    rowA=[xs+2*j for j in range(10)]; rowB=[xs+2*j+1 for j in range(10)]
    layernorm_rows(a,pool,[rowA,rowB],'s65','s66',70)
    a('s_mul_i32 s5, s3, 5120')
    a('v_mul_u32_u24 v%d, 80, v%d'%(va,lane)); a('v_add_u32 v%d, s5, v%d'%(va,va))
    for d in range(5):
        a('ds_write_b128 v%d, v[%d:%d] offset:%d'%(va,xs+4*d,xs+4*d+3,L0+16*d))
    pool.rel(xs,20); pool.rel(lane); pool.rel(va)
    a.label('.Lk1_b0')
    a('s_waitcnt lgkmcnt(0)'); a('s_barrier')
    ad=pool.alloc(); t=pool.alloc()
    a('v_mul_u32_u24 v%d, 640, v%d'%(ad,p)); a('v_add_u32 v%d, v%d, v%d'%(ad,ad,i)); a('v_lshlrev_b32 v%d, 3, v%d'%(ad,ad))
    x=lds_read_c(a,pool,ad,[L0+640*j for j in range(8)])
    a('v_mul_u32_u24 v%d, 848, v%d'%(ad,p)); a('v_add_u32 v%d, v%d, v%d'%(ad,ad,i)); a('v_lshlrev_b32 v%d, 3, v%d'%(ad,ad))
    a('s_waitcnt vmcnt(0) lgkmcnt(0)')
    y=g.dft8(x,False,'s60')
    for k in range(8):
        z = g.topair(y[k]) if k==0 else g.cmul_tw(y[k],tw1+2*k,tw1+2*k+1,False)
        lds_write_c(a,pool,g,ad,L1+848*k,z)
    a('s_waitcnt lgkmcnt(0)'); a('s_barrier')
    a('v_mul_u32_u24 v%d, 848, v%d'%(ad,p)); a('v_mul_u32_u24 v%d, 106, v%d'%(t,k1))
    a('v_add3_u32 v%d, v%d, v%d, v%d'%(ad,ad,t,u)); a('v_lshlrev_b32 v%d, 3, v%d'%(ad,ad))
    x=lds_read_c(a,pool,ad,[L1+80*j for j in range(8)])
    a('v_mul_u32_u24 v%d, 704, v%d'%(ad,p)); a('v_mul_u32_u24 v%d, 11, v%d'%(t,k1))
    a('v_add3_u32 v%d, v%d, v%d, v%d'%(ad,ad,t,u)); a('v_lshlrev_b32 v%d, 3, v%d'%(ad,ad))
    a('s_waitcnt lgkmcnt(0)')
    y=g.dft8(x,False,'s60')
    for k in range(8):
        z = g.topair(y[k]) if k==0 else g.cmul_tw(y[k],tw2+2*k,tw2+2*k+1,False)
        lds_write_c(a,pool,g,ad,L0+704*k,z)
    pool.rel(tw1,16); pool.rel(tw2,16)
    a('s_waitcnt lgkmcnt(0)'); a('s_barrier')
    a('s_cmp_ge_u32 s3, 4'); a('s_cbranch_scc1 .Lk1_b3')
    a('v_and_b32 v%d, 63, v0'%t)
    a('s_mul_i32 s5, s3, 704*8')
    a('v_mul_u32_u24 v%d, 88, v%d'%(ad,t)); a('v_add_u32 v%d, s5, v%d'%(ad,ad))
    x=lds_read_c(a,pool,ad,[L0+8*uu for uu in range(10)])
    a('s_mul_i32 s5, s3, 648*8')
    a('v_lshlrev_b32 v%d, 3, v%d'%(ad,t)); a('v_add_u32 v%d, s5, v%d'%(ad,ad))
    a('s_waitcnt lgkmcnt(0)')
    y=g.dft10(x,False,K5)
    for k in range(10):
        z=g.topair(y[k]); lds_write_c(a,pool,g,ad,L1+512*k,z)
    a.label('.Lk1_b3')
    a('s_waitcnt lgkmcnt(0)'); a('s_barrier')
    a('s_mul_i32 s4, s2, %d'%XF_BLK)
    idx=pool.alloc(); kk=pool.alloc(); a2=pool.alloc()
    for it in range(5):
        a('v_add_u32 v%d, %d, v0'%(idx,320*it))
        a('v_lshrrev_b32 v%d, 2, v%d'%(kk,idx)); a('v_and_b32 v%d, 3, v%d'%(t,idx))
        a('v_mul_u32_u24 v%d, 648, v%d'%(t,t))
        a('v_add_u32 v%d, v%d, v%d'%(ad,t,kk))
        a('v_sub_u32 v%d, 640, v%d'%(a2,kk))
        a('v_cmp_eq_u32 vcc, 0, v%d'%kk)
        a('v_cndmask_b32 v%d, v%d, 0, vcc'%(a2,a2))
        a('v_add_u32 v%d, v%d, v%d'%(a2,a2,t))
        a('v_lshlrev_b32 v%d, 3, v%d'%(ad,ad)); a('v_lshlrev_b32 v%d, 3, v%d'%(a2,a2))
        zz=pool.alloc(2,2); ww=pool.alloc(2,2); o=pool.alloc(4,4)
        a('ds_read_b64 v[%d:%d], v%d offset:%d'%(zz,zz+1,ad,L1))
        a('ds_read_b64 v[%d:%d], v%d offset:%d'%(ww,ww+1,a2,L1))
        a('v_lshlrev_b32 v%d, 4, v%d'%(idx,idx))
        a('s_waitcnt lgkmcnt(0)')
        a('v_add_f32 v%d, v%d, v%d'%(o,zz,ww)); a('v_sub_f32 v%d, v%d, v%d'%(o+1,zz+1,ww+1))
        a('v_add_f32 v%d, v%d, v%d'%(o+2,zz+1,ww+1)); a('v_sub_f32 v%d, v%d, v%d'%(o+3,ww,zz))
        if it==4:
            a('v_cmp_gt_u32 vcc, %d, v%d'%(1284*16,idx))
            a('s_and_saveexec_b64 s[6:7], vcc')
        a('buffer_store_dwordx4 v[%d:%d], v%d, s[40:43], s4 offen'%(o,o+3,idx))
        if it==4:
            a('s_mov_b64 exec, s[6:7]')
        pool.rel(zz,2); pool.rel(ww,2); pool.rel(o,4)
    a('s_endpgm')
    a.label('.Lk1_wt')
    pool2=Pool(1,128)
    srd(a,48,18,2048*642); srd(a,52,20,2048*642)
    a('s_sub_u32 s4, s2, 256')
    a('s_lshr_b32 s5, s4, 4')
    a('s_lshr_b32 s6, s4, 1'); a('s_and_b32 s6, s6, 7')
    a('s_lshl_b32 s6, s6, 3'); a('s_add_u32 s5, s5, s6')
    a('s_and_b32 s6, s4, 1'); a('s_lshl_b32 s6, s6, 8'); a('s_add_u32 s5, s5, s6')
    a('s_mul_i32 s5, s5, 642')
    for rnd in range(2):
        va=pool2.alloc(); vo=pool2.alloc(); d=pool2.alloc(16,4); e=pool2.alloc(16,4)
        if rnd==0: a('v_lshlrev_b32 v%d, 1, v0'%va); a('v_lshlrev_b32 v%d, 13, v0'%vo)
        else:
            a('v_cmp_eq_u32 vcc, 0, v0'); a('s_and_saveexec_b64 s[6:7], vcc'); a('s_cbranch_execz .Lk1_wt_done')
            a('v_mov_b32 v%d, 640'%va); a('v_mov_b32 v%d, %d'%(vo,320*8192))
        for q in range(16):
            a('s_add_u32 s8, s5, %d'%((64*(q>>2)+512*(q&3))*642))
            a('buffer_load_ushort v%d, v%d, s[48:51], s8 offen'%(d+q,va))
            a('buffer_load_ushort v%d, v%d, s[52:55], s8 offen'%(e+q,va))
        a('s_lshl_b32 s8, s4, 6'); a('s_add_u32 s8, s8, %d'%WT_OFF)
        a('s_waitcnt vmcnt(0)')
        for q in range(16):
            a('v_lshl_or_b32 v%d, v%d, 16, v%d'%(d+q,e+q,d+q))
        for q in range(4):
            a('buffer_store_dwordx4 v[%d:%d], v%d, s[40:43], s8 offen offset:%d'%(d+4*q,d+4*q+3,vo,16*q))
        pool2.rel(va); pool2.rel(vo); pool2.rel(d,16); pool2.rel(e,16)
    a.label('.Lk1_wt_done')
    a.label('.Lk1_end')
    a('s_endpgm')
    kernels.append(('k1_rowfft_kernel',a.text(),max(pool.hi,pool2.hi),102))
    launches.append(('k1_rowfft_kernel',384,320,ROW_LDS))


NCOL_WG=321
TJOBS=240
CA=0; CB=18432; COL_LDS=CB+18432
SCALE=np.float32(0.5/(2048.0*640.0))
def gen_k2():
    a=Asm(); pool=Pool(1,128); g=FFTGen(a,pool)
    a('s_cmp_ge_u32 s2, %d'%(NCOL_WG+TJOBS)); a('s_cbranch_scc1 .Lk2_end')
    a('s_load_dwordx4 s[16:19], s[0:1], 32')
    a('s_load_dwordx2 s[20:21], s[0:1], 48')
    a('s_load_dwordx2 s[24:25], s[0:1], 80')
    table_srd(a,44,'k2')
    setup_consts(a)
    a('s_waitcnt lgkmcnt(0)')
    srd(a,40,24,WS_SIZE)
    a('s_cmp_ge_u32 s2, %d'%NCOL_WG); a('s_cbranch_scc1 .Lk2_tr')
    a('s_and_b32 s4, s2, 7'); a('s_lshl_b32 s4, s4, 1')
    a('s_lshr_b32 s5, s2, 3'); a('s_and_b32 s5, s5, 1'); a('s_add_u32 s4, s4, s5')
    a('s_and_b32 s5, s2, 0xfffffff0'); a('s_add_u32 s4, s4, s5')
    va=pool.alloc(); t=pool.alloc(); ad=pool.alloc()
    a('v_lshrrev_b32 v%d, 3, v0'%va); a('v_mul_u32_u24 v%d, %d, v%d'%(va,XF_BLK,va))
    a('v_and_b32 v%d, 7, v0'%t); a('v_lshl_add_u32 v%d, v%d, 3, v%d'%(va,t,va))
    a('s_lshl_b32 s5, s4, 6')
    for j in range(8):
        a('s_add_u32 s%d, s5, %d'%(8+j,XF_OFF+j*32*XF_BLK))
    x=[]
    for j in range(8):
        b=pool.alloc(2,2)
        a('buffer_load_dwordx2 v[%d:%d], v%d, s[40:43], s%d offen'%(b,b+1,va,8+j))
        x.append(C(R(b),R(b+1)))
    a('v_lshlrev_b32 v%d, 4, v0'%t); tw1=load_tw(a,pool,t,CT1,256,44)
    a('v_and_b32 v%d, 31, v0'%t); a('v_lshlrev_b32 v%d, 4, v%d'%(t,t)); tw2=load_tw(a,pool,t,CT2,32,44)
    a('v_and_b32 v%d, 3, v0'%t); a('v_lshlrev_b32 v%d, 4, v%d'%(t,t)); tw3=load_tw(a,pool,t,CT3,4,44)
    wv=pool.alloc(8,4)
    a('s_lshl_b32 s5, s4, 13'); a('s_add_u32 s5, s5, %d'%WT_OFF)
    a('v_lshlrev_b32 v%d, 5, v0'%t)
    a('buffer_load_dwordx4 v[%d:%d], v%d, s[40:43], s5 offen'%(wv,wv+3,t))
    a('buffer_load_dwordx4 v[%d:%d], v%d, s[40:43], s5 offen offset:16'%(wv+4,wv+7,t))
    a1=pool.alloc(); a2=pool.alloc(); a3=pool.alloc(); a4=pool.alloc(); a5=pool.alloc(); a6=pool.alloc()
    a('v_lshlrev_b32 v%d, 3, v0'%a1)
    a('v_lshrrev_b32 v%d, 5, v0'%t); a('v_lshlrev_b32 v%d, 8, v%d'%(a2,t)); a('v_and_b32 v%d, 31, v0'%ad)
    a('v_add_u32 v%d, v%d, v%d'%(a2,a2,ad)); a('v_lshlrev_b32 v%d, 3, v%d'%(a2,a2))
    a('v_mul_u32_u24 v%d, 288, v%d'%(a3,t)); a('v_add_u32 v%d, v%d, v%d'%(a3,a3,ad)); a('v_lshlrev_b32 v%d, 3, v%d'%(a3,a3))
    a('v_lshrrev_b32 v%d, 2, v0'%t); a('v_mul_u32_u24 v%d, 36, v%d'%(a4,t)); a('v_and_b32 v%d, 3, v0'%ad)
    a('v_lshlrev_b32 v%d, 3, v%d'%(a6,ad)); a('v_add_u32 v%d, v%d, v%d'%(a6,a6,a4)); a('v_lshlrev_b32 v%d, 3, v%d'%(a6,a6))
    a('v_add_u32 v%d, v%d, v%d'%(a4,a4,ad)); a('v_lshlrev_b32 v%d, 3, v%d'%(a4,a4))
    pool.rel(a5)
    a('s_waitcnt vmcnt(22)' if False else 's_waitcnt vmcnt(10)')
    y=g.dft8(x,False,'s60')
    for k in range(8):
        z = g.topair(y[k]) if k==0 else g.cmul_tw(y[k],tw1+2*k,tw1+2*k+1,False)
        lds_write_c(a,pool,g,a1,CA+2048*k,z)
    a('s_waitcnt lgkmcnt(0)'); a('s_barrier')
    x=lds_read_c(a,pool,a2,[CA+256*j for j in range(8)])
    a('s_waitcnt vmcnt(6) lgkmcnt(0)')
    y=g.dft8(x,False,'s60')
    for k in range(8):
        z = g.topair(y[k]) if k==0 else g.cmul_tw(y[k],tw2+2*k,tw2+2*k+1,False)
        lds_write_c(a,pool,g,a3,CB+288*k,z)
    a('s_waitcnt lgkmcnt(0)'); a('s_barrier')
    x=lds_read_c(a,pool,a4,[CB+32*j for j in range(8)])
    a('s_waitcnt vmcnt(2) lgkmcnt(0)')
    y=g.dft8(x,False,'s60')
    for k in range(8):
        z = g.topair(y[k]) if k==0 else g.cmul_tw(y[k],tw3+2*k,tw3+2*k+1,False)
        lds_write_c(a,pool,g,a4,CA+32*k,z)
    a('s_waitcnt lgkmcnt(0)'); a('s_barrier')
    x=lds_read_c(a,pool,a6,[CA+8*e for e in range(8)])
    a('s_mov_b32 s67, 0x%x'%f2u(SCALE))
    a('s_waitcnt vmcnt(0) lgkmcnt(0)')
    ya=g.dft4(x[0:4],False); yb=g.dft4(x[4:8],False)
    Y=[]
    wr=pool.alloc(); wi=pool.alloc()
    for e,yy in enumerate(ya+yb):
        a('v_lshlrev_b32 v%d, 16, v%d'%(wr,wv+e)); a('v_and_b32 v%d, 0xffff0000, v%d'%(wi,wv+e))
        a('v_mul_f32 v%d, s67, v%d'%(wr,wr)); a('v_mul_f32 v%d, s67, v%d'%(wi,wi))
        Y.append(g.cmul_tw(yy,wr,wi,False))
    pool.rel(wr); pool.rel(wi); pool.rel(wv,8)
    za=g.dft4(Y[0:4],True); zb=g.dft4(Y[4:8],True)
    for e,zz in enumerate(za+zb):
        z=g.topair(zz); lds_write_c(a,pool,g,a6,CB+8*e,z)
    a('s_waitcnt lgkmcnt(0)'); a('s_barrier')
    x=lds_read_c(a,pool,a4,[CB+32*k for k in range(8)])
    a('s_waitcnt lgkmcnt(0)')
    x=[x[0]]+[g.cmul_tw(x[k],tw3+2*k,tw3+2*k+1,True) for k in range(1,8)]
    y=g.dft8(x,True,'s60')
    for j in range(8):
        z=g.topair(y[j]); lds_write_c(a,pool,g,a4,CA+32*j,z)
    a('s_waitcnt lgkmcnt(0)'); a('s_barrier')
    x=lds_read_c(a,pool,a3,[CA+288*k for k in range(8)])
    a('s_waitcnt lgkmcnt(0)')
    x=[x[0]]+[g.cmul_tw(x[k],tw2+2*k,tw2+2*k+1,True) for k in range(1,8)]
    y=g.dft8(x,True,'s60')
    for j in range(8):
        z=g.topair(y[j]); lds_write_c(a,pool,g,a2,CB+256*j,z)
    a('s_waitcnt lgkmcnt(0)'); a('s_barrier')
    x=lds_read_c(a,pool,a1,[CB+2048*k for k in range(8)])
    a('s_waitcnt lgkmcnt(0)')
    x=[x[0]]+[g.cmul_tw(x[k],tw1+2*k,tw1+2*k+1,True) for k in range(1,8)]
    y=g.dft8(x,True,'s60')
    for j in range(8):
        z=g.topair(y[j])
        a('buffer_store_dwordx2 v[%d:%d], v%d, s[40:43], s%d offen'%(z.re.r,z.im.r,va,8+j))
        g.relc(z)
    a('s_endpgm')
    a.label('.Lk2_tr')
    p2=Pool(1,128)
    a('s_sub_u32 s4, s2, %d'%NCOL_WG)
    a('s_cmp_ge_u32 s4, 120'); a('s_cbranch_scc1 .Lk2_tr2')
    srd(a,36,16,640*3072)
    a('s_mul_i32 s5, s4, 6554'); a('s_lshr_b32 s5, s5, 16')
    a('s_mul_i32 s6, s5, 10'); a('s_sub_u32 s6, s4, s6')
    a('s_mov_b32 s7, 3072')
    a('s_mov_b32 s8, 1280')
    a('s_mov_b32 s9, %d'%W1T_OFF)
    a('s_branch .Lk2_trc')
    a.label('.Lk2_tr2')
    srd(a,36,20,1536*1280)
    a('s_sub_u32 s4, s4, 120')
    a('s_mul_i32 s5, s4, 2731'); a('s_lshr_b32 s5, s5, 16')
    a('s_mul_i32 s6, s5, 24'); a('s_sub_u32 s6, s4, s6')
    a('s_mov_b32 s7, 1280'); a('s_mov_b32 s8, 3072'); a('s_mov_b32 s9, %d'%W2T_OFF)
    a.label('.Lk2_trc')
    va=p2.alloc(); t=p2.alloc(); vl=p2.alloc(); d=p2.alloc(16,4)
    a('s_lshl_b32 s10, s6, 6'); a('s_mul_i32 s10, s10, s7'); a('s_lshl_b32 s11, s5, 8'); a('s_add_u32 s10, s10, s11')
    a('v_lshrrev_b32 v%d, 4, v0'%t); a('v_mul_lo_u32 v%d, v%d, s7'%(va,t))
    a('v_and_b32 v%d, 15, v0'%vl); a('v_lshl_add_u32 v%d, v%d, 4, v%d'%(va,vl,va))
    a('v_mul_u32_u24 v%d, 264, v%d'%(t,t)); a('v_lshl_add_u32 v%d, v%d, 4, v%d'%(vl,vl,t))
    a('s_lshl_b32 s11, s7, 4')
    for i in range(4):
        a('buffer_load_dwordx4 v[%d:%d], v%d, s[36:39], s10 offen'%(d+4*i,d+4*i+3,va))
        a('s_add_u32 s10, s10, s11')
    for i in range(4):
        a('s_waitcnt vmcnt(%d)'%(3-i))
        a('ds_write_b64 v%d, v[%d:%d] offset:%d'%(vl,d+4*i,d+4*i+1,16*264*i))
        a('ds_write_b64 v%d, v[%d:%d] offset:%d'%(vl,d+4*i+2,d+4*i+3,16*264*i+8))
    a('s_waitcnt lgkmcnt(0)'); a('s_barrier')
    a('v_lshrrev_b32 v%d, 1, v0'%t); a('v_and_b32 v%d, 1, v0'%va)
    a('v_mul_u32_u24 v%d, %d, v%d'%(vl,32*264,va)); a('v_lshl_add_u32 v%d, v%d, 1, v%d'%(vl,t,vl))
    e=p2.alloc(16,4)
    for kk in range(32):
        if kk%2==0: a('ds_read_u16 v%d, v%d offset:%d'%(d+kk//2,vl,264*kk))
        else: a('ds_read_u16 v%d, v%d offset:%d'%(e+kk//2,vl,264*kk))
    a('s_lshl_b32 s10, s5, 7'); a('s_mul_i32 s10, s10, s8'); a('s_add_u32 s10, s10, s9'); a('s_lshl_b32 s11, s6, 7'); a('s_add_u32 s10, s10, s11')
    a('v_mul_lo_u32 v%d, v%d, s8'%(t,t)); a('v_lshl_add_u32 v%d, v%d, 6, v%d'%(t,va,t))
    a('s_waitcnt lgkmcnt(0)')
    for q in range(16): a('v_lshl_or_b32 v%d, v%d, 16, v%d'%(d+q,e+q,d+q))
    for i in range(4):
        a('buffer_store_dwordx4 v[%d:%d], v%d, s[40:43], s10 offen offset:%d'%(d+4*i,d+4*i+3,t,16*i))
    a.label('.Lk2_end')
    a('s_endpgm')
    kernels.append(('k2_colfft_kernel',a.text(),max(pool.hi,p2.hi),102))
    launches.append(('k2_colfft_kernel',NCOL_WG+TJOBS,256,COL_LDS))


def gen_k3():
    a=Asm(); pool=Pool(1,128); g=FFTGen(a,pool)
    a('s_cmp_ge_u32 s2, 256'); a('s_cbranch_scc1 .Lk3_end')
    a('s_load_dwordx2 s[16:17], s[0:1], 0')
    a('s_load_dwordx2 s[24:25], s[0:1], 80')
    table_srd(a,44,'k3')
    setup_consts(a)
    a('v_lshrrev_b32 v1, 6, v0')
    a('s_waitcnt lgkmcnt(0)')
    a('v_readfirstlane_b32 s3, v1')
    srd(a,40,24,WS_SIZE); srd(a,36,16,2048*1280)
    a('s_mul_i32 s4, s2, %d'%XF_BLK)
    idx=pool.alloc(); yv=pool.alloc(20,4)
    for it in range(5):
        a('v_add_u32 v%d, %d, v0'%(idx,320*it)); a('v_lshlrev_b32 v%d, 4, v%d'%(idx,idx))
        a('buffer_load_dwordx4 v[%d:%d], v%d, s[40:43], s4 offen'%(yv+4*it,yv+4*it+3,idx))
    p,i,k1,u=row_thread_ids(a,pool)
    t=pool.alloc(); ad=pool.alloc(); a2=pool.alloc(); kk=pool.alloc()
    a('v_lshlrev_b32 v%d, 4, v%d'%(t,i)); tw1=load_tw(a,pool,t,RT1,80,44)
    a('v_lshlrev_b32 v%d, 4, v%d'%(t,u)); tw2=load_tw(a,pool,t,RT2,10,44)
    lane=pool.alloc(); va=pool.alloc(); raw=pool.alloc(12,4)
    a('v_and_b32 v%d, 63, v0'%lane)
    a('s_lshl_b32 s5, s2, 3'); a('s_and_b32 s6, s3, 3'); a('s_lshl_b32 s6, s6, 1'); a('s_add_u32 s5, s5, s6'); a('s_mul_i32 s5, s5, 1280')
    a('v_mul_u32_u24 v%d, 20, v%d'%(va,lane))
    a('buffer_load_dwordx4 v[%d:%d], v%d, s[36:39], s5 offen'%(raw,raw+3,va))
    a('buffer_load_dword v%d, v%d, s[36:39], s5 offen offset:16'%(raw+4,va))
    a('buffer_load_dwordx4 v[%d:%d], v%d, s[36:39], s5 offen offset:1280'%(raw+8,raw+11,va))
    a('buffer_load_dword v%d, v%d, s[36:39], s5 offen offset:1296'%(raw+5,va))
    a('s_waitcnt vmcnt(12)')
    for it in range(5):
        a('v_add_u32 v%d, %d, v0'%(idx,320*it))
        a('v_lshrrev_b32 v%d, 2, v%d'%(kk,idx)); a('v_and_b32 v%d, 3, v%d'%(t,idx))
        a('v_mul_u32_u24 v%d, 648, v%d'%(t,t))
        a('v_add_u32 v%d, v%d, v%d'%(ad,t,kk)); a('v_sub_u32 v%d, 640, v%d'%(a2,kk)); a('v_add_u32 v%d, v%d, v%d'%(a2,a2,t))
        a('v_lshlrev_b32 v%d, 3, v%d'%(ad,ad)); a('v_lshlrev_b32 v%d, 3, v%d'%(a2,a2))
        y0=yv+4*it
        if it in (0,4):
            a('v_cmp_eq_u32 vcc, %d, v%d'%(0 if it==0 else 320,kk))
            a('v_cndmask_b32 v%d, v%d, 0, vcc'%(y0+1,y0+1)); a('v_cndmask_b32 v%d, v%d, 0, vcc'%(y0+3,y0+3))
        z=pool.alloc(2,2); w=pool.alloc(2,2)
        a('v_sub_f32 v%d, v%d, v%d'%(z,y0,y0+3)); a('v_add_f32 v%d, v%d, v%d'%(z+1,y0+1,y0+2))
        a('v_add_f32 v%d, v%d, v%d'%(w,y0,y0+3)); a('v_sub_f32 v%d, v%d, v%d'%(w+1,y0+2,y0+1))
        if it==4:
            a('v_cmp_gt_u32 vcc, 1284, v%d'%idx); a('s_and_saveexec_b64 s[6:7], vcc')
        a('ds_write_b64 v%d, v[%d:%d] offset:%d'%(ad,z,z+1,L1))
        a('ds_write_b64 v%d, v[%d:%d] offset:%d'%(a2,w,w+1,L1))
        if it==4: a('s_mov_b64 exec, s[6:7]')
        pool.rel(z,2); pool.rel(w,2)
    pool.rel(yv,20); pool.rel(idx); pool.rel(kk); pool.rel(a2)
    a('s_waitcnt lgkmcnt(0)'); a('s_barrier')
    a('s_cmp_ge_u32 s3, 4'); a('s_cbranch_scc1 .Lk3_b1')
    a('s_mul_i32 s6, s3, 648*8')
    a('v_lshlrev_b32 v%d, 3, v%d'%(ad,lane)); a('v_add_u32 v%d, s6, v%d'%(ad,ad))
    x=lds_read_c(a,pool,ad,[L1+512*k for k in range(10)])
    a('s_mul_i32 s6, s3, 704*8')
    a('v_mul_u32_u24 v%d, 88, v%d'%(ad,lane)); a('v_add_u32 v%d, s6, v%d'%(ad,ad))
    a('s_waitcnt lgkmcnt(0)')
    y=g.dft10(x,True,K5)
    for uu in range(10):
        z=g.topair(y[uu]); lds_write_c(a,pool,g,ad,L0+8*uu,z)
    a.label('.Lk3_b1')
    a('s_waitcnt lgkmcnt(0)'); a('s_barrier')
    a('v_mul_u32_u24 v%d, 704, v%d'%(ad,p)); a('v_mul_u32_u24 v%d, 11, v%d'%(t,k1))
    a('v_add3_u32 v%d, v%d, v%d, v%d'%(ad,ad,t,u)); a('v_lshlrev_b32 v%d, 3, v%d'%(ad,ad))
    x=lds_read_c(a,pool,ad,[L0+704*k for k in range(8)])
    a('v_mul_u32_u24 v%d, 848, v%d'%(ad,p)); a('v_mul_u32_u24 v%d, 106, v%d'%(t,k1))
    a('v_add3_u32 v%d, v%d, v%d, v%d'%(ad,ad,t,u)); a('v_lshlrev_b32 v%d, 3, v%d'%(ad,ad))
    a('s_waitcnt vmcnt(4) lgkmcnt(0)')
    x=[x[0]]+[g.cmul_tw(x[k],tw2+2*k,tw2+2*k+1,True) for k in range(1,8)]
    y=g.dft8(x,True,'s60')
    for j in range(8):
        z=g.topair(y[j]); lds_write_c(a,pool,g,ad,L1+80*j,z)
    a('s_waitcnt lgkmcnt(0)'); a('s_barrier')
    a('v_mul_u32_u24 v%d, 848, v%d'%(ad,p)); a('v_add_u32 v%d, v%d, v%d'%(ad,ad,i)); a('v_lshlrev_b32 v%d, 3, v%d'%(ad,ad))
    x=lds_read_c(a,pool,ad,[L1+848*k for k in range(8)])
    a('v_mul_u32_u24 v%d, 640, v%d'%(ad,p)); a('v_add_u32 v%d, v%d, v%d'%(ad,ad,i)); a('v_lshlrev_b32 v%d, 3, v%d'%(ad,ad))
    a('s_waitcnt lgkmcnt(0)')
    x=[x[0]]+[g.cmul_tw(x[k],tw1+2*k,tw1+2*k+1,True) for k in range(1,8)]
    y=g.dft8(x,True,'s60')
    for j in range(8):
        z=g.topair(y[j]); lds_write_c(a,pool,g,ad,L0+640*j,z)
    pool.rel(tw1,16); pool.rel(tw2,16)
    a('s_waitcnt lgkmcnt(0)'); a('s_barrier')
    a('s_cmp_ge_u32 s3, 4'); a('s_cbranch_scc1 .Lk3_end')
    ys=pool.alloc(20,4)
    a('s_mul_i32 s6, s3, 5120')
    a('v_mul_u32_u24 v%d, 80, v%d'%(ad,lane)); a('v_add_u32 v%d, s6, v%d'%(ad,ad))
    for d in range(5):
        a('ds_read_b128 v[%d:%d], v%d offset:%d'%(ys+4*d,ys+4*d+3,ad,L0+16*d))
    a('s_waitcnt vmcnt(0) lgkmcnt(0)')
    srcA=[raw,raw+1,raw+2,raw+3,raw+4]; srcB=[raw+8,raw+9,raw+10,raw+11,raw+5]
    hp=pool.alloc(12,4)
    hpA=[hp,hp+1,hp+2,hp+3,hp+4]; hpB=[hp+8,hp+9,hp+10,hp+11,hp+5]
    t2=pool.alloc()
    for d in range(5):
        for (src,dst,o) in ((srcA[d],hpA[d],0),(srcB[d],hpB[d],1)):
            e0=ys+4*d+o; e1=ys+4*d+2+o
            a('v_cvt_pk_bf16_f32 v%d, v%d, v%d'%(t,e0,e1))
            a('v_lshlrev_b32 v%d, 16, v%d'%(e0,t)); a('v_and_b32 v%d, 0xffff0000, v%d'%(e1,t))
            a('v_lshlrev_b32 v%d, 16, v%d'%(t,src)); a('v_and_b32 v%d, 0xffff0000, v%d'%(t2,src))
            a('v_add_f32 v%d, v%d, v%d'%(e0,e0,t)); a('v_add_f32 v%d, v%d, v%d'%(e1,e1,t2))
            a('v_cvt_pk_bf16_f32 v%d, v%d, v%d'%(dst,e0,e1))
            a('v_lshlrev_b32 v%d, 16, v%d'%(e0,dst)); a('v_and_b32 v%d, 0xffff0000, v%d'%(e1,dst))
    a('s_add_u32 s6, s5, %d'%H_OFF)
    a('buffer_store_dwordx4 v[%d:%d], v%d, s[40:43], s6 offen'%(hp,hp+3,va))
    a('buffer_store_dword v%d, v%d, s[40:43], s6 offen offset:16'%(hp+4,va))
    a('buffer_store_dwordx4 v[%d:%d], v%d, s[40:43], s6 offen offset:1280'%(hp+8,hp+11,va))
    a('buffer_store_dword v%d, v%d, s[40:43], s6 offen offset:1296'%(hp+5,va))
    rowA=[ys+2*j for j in range(10)]; rowB=[ys+2*j+1 for j in range(10)]
    layernorm_rows(a,pool,[rowA,rowB],'s65','s66',70)
    for d in range(5):
        for (dst,o) in ((srcA[d],0),(srcB[d],1)):
            e0=ys+4*d+o; e1=ys+4*d+2+o
            a('v_perm_b32 v%d, v%d, v%d, s68'%(dst,e1,e0))
    a('s_add_u32 s6, s5, %d'%NRM_OFF)
    a('buffer_store_dwordx4 v[%d:%d], v%d, s[40:43], s6 offen'%(raw,raw+3,va))
    a('buffer_store_dword v%d, v%d, s[40:43], s6 offen offset:16'%(raw+4,va))
    a('buffer_store_dwordx4 v[%d:%d], v%d, s[40:43], s6 offen offset:1280'%(raw+8,raw+11,va))
    a('buffer_store_dword v%d, v%d, s[40:43], s6 offen offset:1296'%(raw+5,va))
    a.label('.Lk3_end')
    a('s_endpgm')
    kernels.append(('k3_rowifft_kernel',a.text(),pool.hi,102))
    launches.append(('k3_rowifft_kernel',256,320,ROW_LDS))


def gen_gemm(name, which):
    a=Asm(); pool=Pool(1,200)
    if which==1:
        BM,BN,KT,NS=128,96,10,5; RS=1280; nMt,nNt=4,3
        GR_ACT,GR_W=16,12; SUB=1
        ACT_SRC,W_SRC=NRM_OFF,W1T_OFF
        NTN=16; NWG=256
    else:
        BM,BN,KT,NS=64,80,12,4; RS=3072; nMt,nNt=2,5
        GR_ACT,GR_W=8,10; SUB=2
        ACT_SRC,W_SRC=ACT_OFF,W2T_OFF
        NTN=8; NWG=256
    SUBB=(BM+BN)*128
    STB=SUBB*SUB
    NG=(GR_ACT+GR_W)*SUB
    GPW=NG//4
    assert NG%4==0
    tag=name[:2]
    a('s_cmp_ge_u32 s2, %d'%NWG); a('s_cbranch_scc1 .L%s_end'%tag)
    a('s_load_dwordx2 s[16:17], s[0:1], %d'%(40 if which==1 else 56))
    a('s_load_dwordx2 s[18:19], s[0:1], 64')
    a('s_load_dwordx2 s[24:25], s[0:1], 80')
    a('v_lshrrev_b32 v1, 6, v0')
    a('v_readfirstlane_b32 s3, v1')
    a('s_and_b32 s4, s2, 7'); a('s_lshr_b32 s5, s2, 3')
    if which==1:
        a('s_lshr_b32 s6, s4, 1'); a('s_lshl_b32 s6, s6, 2'); a('s_lshr_b32 s7, s5, 3'); a('s_add_u32 s6, s6, s7')
        a('s_and_b32 s7, s4, 1'); a('s_lshl_b32 s7, s7, 3'); a('s_and_b32 s8, s5, 7'); a('s_add_u32 s7, s7, s8')
    else:
        a('s_lshl_b32 s6, s4, 2'); a('s_lshr_b32 s7, s5, 3'); a('s_add_u32 s6, s6, s7')
        a('s_and_b32 s7, s5, 7')
    a('s_mul_i32 s6, s6, %d'%BM); a('s_mul_i32 s7, s7, %d'%BN)
    a('s_waitcnt lgkmcnt(0)')
    srd(a,40,24,WS_SIZE)
    srd(a,36,16,(1536 if which==1 else 640)*2)
    srd(a,32,18,2048*1280)
    lane=pool.alloc(); t=pool.alloc(); vdma=pool.alloc()
    a('v_and_b32 v%d, 63, v0'%lane)
    a('v_lshrrev_b32 v%d, 3, v%d'%(t,lane)); a('v_and_b32 v%d, 7, v%d'%(vdma,lane)); a('v_xor_b32 v%d, v%d, v%d'%(vdma,vdma,t))
    a('v_lshlrev_b32 v%d, 4, v%d'%(vdma,vdma)); a('v_mul_u32_u24 v%d, %d, v%d'%(t,RS,t)); a('v_add_u32 v%d, v%d, v%d'%(vdma,vdma,t))
    a('s_mov_b32 s14, %d'%W_SRC); a('s_mov_b32 s15, %d'%ACT_SRC)
    for q in range(GPW):
        GS=GR_ACT+GR_W
        a('s_add_u32 s8, s3, %d'%(4*q))
        if SUB==2:
            a('s_cmp_ge_u32 s8, %d'%GS); a('s_cselect_b32 s10, %d, 0'%GS); a('s_cselect_b32 s9, 128, 0')
            a('s_sub_u32 s10, s8, s10')
        else:
            a('s_mov_b32 s10, s8'); a('s_mov_b32 s9, 0')
        a('s_lshl_b32 s%d, s8, 10'%(64+q))
        a('s_cmp_ge_u32 s10, %d'%GR_ACT)
        a('s_cselect_b32 s11, s7, s6')
        a('s_cselect_b32 s12, %d, 0'%GR_ACT)
        a('s_cselect_b32 s13, s14, s15')
        a('s_sub_u32 s10, s10, s12'); a('s_lshl_b32 s10, s10, 3'); a('s_add_u32 s10, s10, s11')
        a('s_mul_i32 s10, s10, %d'%RS); a('s_add_u32 s10, s10, s13'); a('s_add_u32 s%d, s10, s9'%(48+q))
    def issue(stage):
        buf=stage%NS
        for q in range(GPW):
            a('s_add_u32 m0, s%d, %d'%(64+q,buf*STB))
            a('s_add_u32 s8, s%d, %d'%(48+q,stage*128*SUB))
            a('buffer_load_dwordx4 v%d, s[40:43], s8 offen lds'%vdma)
    for st in range(NS-1): issue(st)
    fa=pool.alloc(); fb=pool.alloc(); g_=pool.alloc()
    a('v_lshrrev_b32 v%d, 4, v%d'%(g_,lane)); a('v_and_b32 v%d, 7, v%d'%(t,lane)); a('v_xor_b32 v%d, v%d, v%d'%(t,t,g_))
    a('v_lshlrev_b32 v%d, 4, v%d'%(t,t)); a('v_and_b32 v%d, 15, v%d'%(fa,lane)); a('v_lshl_add_u32 v%d, v%d, 7, v%d'%(fa,fa,t))
    if which==1:
        a('s_lshr_b32 s8, s3, 1'); a('s_mul_i32 s8, s8, %d'%(64*128)); a('s_and_b32 s9, s3, 1'); a('s_mul_i32 s9, s9, %d'%(48*128)); a('s_add_u32 s9, s9, %d'%(BM*128))
    else:
        a('s_lshr_b32 s10, s3, 1'); a('s_mul_i32 s10, s10, %d'%SUBB)
        a('s_and_b32 s8, s3, 1'); a('s_mul_i32 s8, s8, %d'%(32*128)); a('s_add_u32 s8, s8, s10'); a('s_add_u32 s9, s10, %d'%(BM*128))
    a('v_add_u32 v%d, s9, v%d'%(fb,fa)); a('v_add_u32 v%d, s8, v%d'%(fa,fa))
    acc=pool.alloc(4*nMt*nNt,4)
    for r in range(4*nMt*nNt): a('v_mov_b32 v%d, 0'%(acc+r))
    fr=[pool.alloc(4*(nMt+nNt),4) for _ in range(2)]
    ca=pool.alloc(); cb=pool.alloc()
    for it in range(KT):
        inflight=min(KT-1,it+NS-2)-it
        a('s_waitcnt vmcnt(%d)'%(inflight*GPW))
        a('s_barrier')
        buf=it%NS
        a('v_add_u32 v%d, %d, v%d'%(ca,buf*STB,fa)); a('v_add_u32 v%d, %d, v%d'%(cb,buf*STB,fb))
        def reads(ks):
            f=fr[ks]
            for mt in range(nMt): a('ds_read_b128 v[%d:%d], v%d offset:%d'%(f+4*mt,f+4*mt+3,ca,2048*mt))
            for nt in range(nNt): a('ds_read_b128 v[%d:%d], v%d offset:%d'%(f+4*(nMt+nt),f+4*(nMt+nt)+3,cb,2048*nt))
        reads(0)
        a('v_xor_b32 v%d, 64, v%d'%(ca,ca)); a('v_xor_b32 v%d, 64, v%d'%(cb,cb))
        reads(1)
        if it+NS-1<KT: issue(it+NS-1)
        for ks in range(2):
            a('s_waitcnt lgkmcnt(%d)'%((nMt+nNt) if ks==0 else 0))
            f=fr[ks]
            for nt in range(nNt):
                for mt in range(nMt):
                    c=acc+4*(nt*nMt+mt)
                    a('v_mfma_f32_16x16x32_bf16 v[%d:%d], v[%d:%d], v[%d:%d], v[%d:%d]'%(c,c+3,f+4*(nMt+nt),f+4*(nMt+nt)+3,f+4*mt,f+4*mt+3,c,c+3))
    for f in fr: pool.rel(f,4*(nMt+nNt))
    g4=pool.alloc(); vb=pool.alloc(); vo=pool.alloc()
    a('v_lshlrev_b32 v%d, 2, v%d'%(g4,g_))
    if which==2:
        a('s_barrier')
        a('v_lshlrev_b32 v%d, 4, v%d'%(vo,lane))
        a('s_and_b32 s8, s3, 1'); a('s_mul_i32 s8, s8, %d'%(10*1024)); a('v_add_u32 v%d, s8, v%d'%(vo,vo))
        a('s_cmp_lt_u32 s3, 2'); a('s_cbranch_scc1 .L%s_red'%tag)
        for q in range(nMt*nNt):
            a('ds_write_b128 v%d, v[%d:%d] offset:%d'%(vo,acc+4*q,acc+4*q+3,1024*q))
        a('s_waitcnt lgkmcnt(0)'); a('s_barrier'); a('s_endpgm')
        a.label('.L%s_red'%tag)
        a('s_barrier')
        tmp=pool.alloc(40,4)
        for q in range(nMt*nNt):
            a('ds_read_b128 v[%d:%d], v%d offset:%d'%(tmp+4*q,tmp+4*q+3,vo,1024*q))
        a('s_waitcnt lgkmcnt(0)')
        for r in range(40): a('v_add_f32 v%d, v%d, v%d'%(acc+r,acc+r,tmp+r))
        pool.rel(tmp,40)
        wn_off='0';
        a('s_and_b32 s8, s3, 1'); a('s_lshl_b32 s8, s8, 5'); a('s_add_u32 s6, s6, s8')
    else:
        a('s_lshr_b32 s8, s3, 1'); a('s_lshl_b32 s8, s8, 6'); a('s_add_u32 s6, s6, s8')
        a('s_and_b32 s8, s3, 1'); a('s_mul_i32 s8, s8, 48'); a('s_add_u32 s7, s7, s8')
    a('v_add_u32 v%d, s7, v%d'%(vb,g4)); a('v_lshlrev_b32 v%d, 1, v%d'%(vb,vb))
    bias=pool.alloc(2*nNt,2)
    for nt in range(nNt):
        a('buffer_load_dwordx2 v[%d:%d], v%d, s[36:39], 0 offen offset:%d'%(bias+2*nt,bias+2*nt+1,vb,32*nt))
    ORS=3072 if which==1 else 1280
    a('v_and_b32 v%d, 15, v%d'%(vo,lane)); a('v_add_u32 v%d, s6, v%d'%(vo,vo)); a('v_mul_u32_u24 v%d, %d, v%d'%(vo,ORS,vo)); a('v_add_u32 v%d, v%d, v%d'%(vo,vo,vb))
    if which==2:
        hres=pool.alloc(2*nMt*nNt,2)
        for mt in range(nMt):
            a('s_mov_b32 s8, %d'%(H_OFF+16*mt*ORS))
            for nt in range(nNt):
                q=nt*nMt+mt
                a('buffer_load_dwordx2 v[%d:%d], v%d, s[40:43], s8 offen offset:%d'%(hres+2*q,hres+2*q+1,vo,32*nt))
    a('s_waitcnt vmcnt(0)')
    bf=pool.alloc(4*nNt)
    for nt in range(nNt):
        for hh in range(2):
            a('v_lshlrev_b32 v%d, 16, v%d'%(bf+4*nt+2*hh,bias+2*nt+hh)); a('v_and_b32 v%d, 0xffff0000, v%d'%(bf+4*nt+2*hh+1,bias+2*nt+hh))
    t2=pool.alloc();
    for mt in range(nMt):
        a('s_mov_b32 s8, %d'%((ACT_OFF if which==1 else 0)+16*mt*ORS))
        for nt in range(nNt):
            q=nt*nMt+mt; c=acc+4*q
            o=pool.alloc(2,2)
            for hh in range(2):
                e0,e1=c+2*hh,c+2*hh+1
                a('v_cvt_pk_bf16_f32 v%d, v%d, v%d'%(t,e0,e1))
                a('v_lshlrev_b32 v%d, 16, v%d'%(e0,t)); a('v_and_b32 v%d, 0xffff0000, v%d'%(e1,t))
                a('v_add_f32 v%d, v%d, v%d'%(e0,e0,bf+4*nt+2*hh)); a('v_add_f32 v%d, v%d, v%d'%(e1,e1,bf+4*nt+2*hh+1))
                a('v_cvt_pk_bf16_f32 v%d, v%d, v%d'%(t,e0,e1))
                a('v_lshlrev_b32 v%d, 16, v%d'%(e0,t)); a('v_and_b32 v%d, 0xffff0000, v%d'%(e1,t))
                if which==1:
                    a('v_max_f32 v%d, 0, v%d'%(e0,e0)); a('v_max_f32 v%d, 0, v%d'%(e1,e1))
                    a('v_mul_f32 v%d, v%d, v%d'%(e0,e0,e0)); a('v_mul_f32 v%d, v%d, v%d'%(e1,e1,e1))
                else:
                    a('v_lshlrev_b32 v%d, 16, v%d'%(t,hres+2*q+hh)); a('v_and_b32 v%d, 0xffff0000, v%d'%(t2,hres+2*q+hh))
                    a('v_add_f32 v%d, v%d, v%d'%(e0,e0,t)); a('v_add_f32 v%d, v%d, v%d'%(e1,e1,t2))
                a('v_cvt_pk_bf16_f32 v%d, v%d, v%d'%(o+hh,e0,e1))
            a('buffer_store_dwordx2 v[%d:%d], v%d, s[%s], s8 offen offset:%d'%(o,o+1,vo,'40:43' if which==1 else '32:35',32*nt))
            pool.rel(o,2)
    a.label('.L%s_end'%tag)
    a('s_endpgm')
    kernels.append((name,a.text(),pool.hi,102))
    launches.append((name,NWG,256,NS*STB))

def emit(path):
    out=[]
    for (k,grid,blk,lds) in launches:
        out.append('; @launch kernel=%s grid=(%d,1,1) block=(%d,1,1) lds=%d'%(k,grid,blk,lds))
    out.append('.amdgcn_target "amdgcn-amd-amdhsa--gfx950"')
    out.append('.text')
    for (k,text,nv,ns) in kernels:
        out.append('.globl %s\n.p2align 8\n.type %s,@function\n%s:'%(k,k,k))
        out.append(text)
    out.append('.p2align 8')
    out.append('.type twiddle_table,@object')
    out.append('twiddle_table:')
    u=np.array(tab,dtype=np.float32).view(np.uint32)
    for n in range(0,len(u),8):
        out.append('.long '+','.join('0x%08x'%v for v in u[n:n+8]))
    out.append('.section .rodata,"a"')
    for (k,text,nv,ns) in kernels:
        nv=max(nv,8)
        out.append('.p2align 6\n.amdhsa_kernel %s'%k)
        out.append('  .amdhsa_next_free_vgpr %d'%nv)
        out.append('  .amdhsa_next_free_sgpr %d'%ns)
        out.append('  .amdhsa_accum_offset %d'%(((nv+3)//4)*4))
        out.append('  .amdhsa_group_segment_fixed_size 0')
        out.append('  .amdhsa_kernarg_size 88')
        out.append('  .amdhsa_user_sgpr_count 2')
        out.append('  .amdhsa_user_sgpr_kernarg_segment_ptr 1')
        out.append('  .amdhsa_system_sgpr_workgroup_id_x 1')
        out.append('  .amdhsa_float_denorm_mode_32 3')
        out.append('  .amdhsa_float_denorm_mode_16_64 3')
        out.append('.end_amdhsa_kernel')
    open(path,'w').write('\n'.join(out)+'\n')

if __name__=='__main__':
    gen_k1()
    gen_k2()
    gen_k3()
    gen_gemm('k4_gemm1_kernel',1)
    gen_gemm('k5_gemm2_kernel',2)
    emit('cdna_kernels/%s.s'%NAME)
```

```python
import numpy as np, sys
from asmlib import *

NAME='sequential_preLN__spectral_gfnet__dense_activation_squared_relu__prompt'

XF_OFF   = 0
XF_BLK   = 321*64
WT_OFF   = 5*1024*1024+256*1024
H_OFF    = 8*1024*1024
NRM_OFF  = 11*1024*1024
W1T_OFF  = 14*1024*1024
W2T_OFF  = 16*1024*1024
ACT_OFF  = 18*1024*1024
WS_SIZE  = 32*1024*1024
assert XF_BLK*256 <= WT_OFF and WT_OFF+321*8192<=H_OFF

def Wc(N,e):
    return np.exp(-2j*np.pi*(e%N)/N)
tab=[]
def add_table(rows, nq, f):
    off=len(tab)*4
    for q in range(nq):
        for r in range(rows):
            for e in range(2):
                w=f(r,2*q+e); tab.append(np.float32(w.real)); tab.append(np.float32(w.imag))
    return off
RT1=add_table(80,4,lambda i,k:Wc(640,i*k))
RT2=add_table(10,4,lambda u,k:Wc(80,u*k))
CT1=add_table(256,4,lambda t,k:Wc(2048,t*k))
CT2=add_table(32,4,lambda u,k:Wc(256,u*k))
CT3=add_table(4,4,lambda v,k:Wc(32,v*k))
TAB_BYTES=len(tab)*4

SQ=f2u(np.float32(np.sqrt(0.5)))
C1=f2u(np.float32(np.cos(2*np.pi/5))); C2=f2u(np.float32(np.cos(4*np.pi/5)))
S1=f2u(np.float32(np.sin(2*np.pi/5))); S2=f2u(np.float32(np.sin(4*np.pi/5)))


import os
STAMPS=bool(int(os.environ.get('STAMPS','0')))
DBG_OFF=30*1024*1024
class Stamper:
    def __init__(self,a,kidx): self.a=a; self.n=0; self.k=kidx
    def __call__(self):
        if not STAMPS: return
        self.a('s_waitcnt lgkmcnt(0)')
        self.a('s_memtime s[%d:%d]'%(80+2*self.n,81+2*self.n)); self.a('s_waitcnt lgkmcnt(0)'); self.n+=1
    def dump(self):
        if not STAMPS: return
        a=self.a
        a('s_waitcnt lgkmcnt(0)')
        a('s_lshl_b32 s99, s2, 6'); a('s_add_u32 s99, s99, %d'%(DBG_OFF+self.k*65536))
        a('v_cmp_eq_u32 vcc, 0, v0'); a('s_and_saveexec_b64 s[100:101], vcc')
        a('v_mov_b32 v1, 0')
        for i in range(self.n):
            a('v_mov_b32 v2, s%d'%(80+2*i))
            a('buffer_store_dword v2, v1, s[40:43], s99 offen offset:%d'%(4*i))
        a('s_mov_b64 exec, s[100:101]')

kernels=[]
launches=[]

def srd(a, d, base, size):
    a('s_mov_b32 s%d, s%d'%(d,base)); a('s_and_b32 s%d, s%d, 0xffff'%(d+1,base+1))
    a('s_mov_b32 s%d, 0x%x'%(d+2,size)); a('s_mov_b32 s%d, 0x00020000'%(d+3))

def table_srd(a, d, tag):
    a('s_getpc_b64 s[%d:%d]'%(d,d+1))
    a.raw('.Lpc_%s:'%tag)
    a('s_add_u32 s%d, s%d, (twiddle_table - .Lpc_%s)'%(d,d,tag))
    a('s_addc_u32 s%d, s%d, 0'%(d+1,d+1))
    a('s_and_b32 s%d, s%d, 0xffff'%(d+1,d+1))
    a('s_mov_b32 s%d, %d'%(d+2,TAB_BYTES)); a('s_mov_b32 s%d, 0x00020000'%(d+3))

def load_tw(a, pool, vaddr, tab_off, rows, stab):
    b=pool.alloc(16,4)
    for q in range(4):
        off=tab_off+q*rows*16
        if off<4096:
            a('buffer_load_dwordx4 v[%d:%d], v%d, s[%d:%d], 0 offen offset:%d'%(b+4*q,b+4*q+3,vaddr,stab,stab+3,off))
        else:
            a('s_mov_b32 s99, %d'%off)
            a('buffer_load_dwordx4 v[%d:%d], v%d, s[%d:%d], s99 offen'%(b+4*q,b+4*q+3,vaddr,stab,stab+3))
    return b

def wave_allreduce(a, pool, regs, stmp):
    pats=['quad_perm:[1,0,3,2]','quad_perm:[2,3,0,1]','row_half_mirror','row_mirror']
    for p in pats:
        for r in regs:
            a('v_add_f32_dpp v%d, v%d, v%d %s row_mask:0xf bank_mask:0xf'%(r,r,r,p))
    for n,r in enumerate(regs):
        for q in range(4):
            a('v_readlane_b32 s%d, v%d, %d'%(stmp+4*n+q,r,16*q))
    for n,r in enumerate(regs):
        s=stmp+4*n
        a('v_mov_b32 v%d, s%d'%(r,s))
        a('v_add_f32 v%d, s%d, v%d'%(r,s+1,r))
        t=pool.alloc()
        a('v_mov_b32 v%d, s%d'%(t,s+2))
        a('v_add_f32 v%d, s%d, v%d'%(t,s+3,t))
        a('v_add_f32 v%d, v%d, v%d'%(r,r,t))
        pool.rel(t)

def bf16r(a, dst, src):
    a('v_cvt_pk_bf16_f32 v%d, v%d, v%d'%(dst,src,src))
    a('v_lshlrev_b32 v%d, 16, v%d'%(dst,dst))

def layernorm_rows(a, pool, rows, s_inv640, s_640, stmp):
    sums=[]
    for x in rows:
        s=pool.alloc()
        a('v_add_f32 v%d, v%d, v%d'%(s,x[0],x[1]))
        for r in x[2:]: a('v_add_f32 v%d, v%d, v%d'%(s,s,r))
        sums.append(s)
    wave_allreduce(a,pool,sums,stmp)
    means=[]
    for s in sums:
        q=pool.alloc(); r=pool.alloc()
        a('v_mul_f32 v%d, %s, v%d'%(q,s_inv640,s))
        a('v_fma_f32 v%d, -v%d, %s, v%d'%(r,q,s_640,s))
        a('v_fma_f32 v%d, v%d, %s, v%d'%(q,r,s_inv640,q))
        pool.rel(r); pool.rel(s); means.append(q)
    vs=[]
    for x,m in zip(rows,means):
        s=pool.alloc(); t=pool.alloc()
        for n,r in enumerate(x):
            a('v_sub_f32 v%d, v%d, v%d'%(t,r,m))
            if n==0: a('v_mul_f32 v%d, v%d, v%d'%(s,t,t))
            else: a('v_fmac_f32 v%d, v%d, v%d'%(s,t,t))
        pool.rel(t); vs.append(s)
    wave_allreduce(a,pool,vs,stmp)
    for x,m,s in zip(rows,means,vs):
        q=pool.alloc(); r=pool.alloc()
        a('v_mul_f32 v%d, %s, v%d'%(q,s_inv640,s))
        a('v_fma_f32 v%d, -v%d, %s, v%d'%(r,q,s_640,s))
        a('v_fma_f32 v%d, v%d, %s, v%d'%(q,r,s_inv640,q))
        bf16r(a,q,q)
        a('v_add_f32 v%d, 0x%x, v%d'%(q,f2u(np.float32(1e-5)),q))
        bf16r(a,q,q)
        a('v_sqrt_f32 v%d, v%d'%(q,q))
        bf16r(a,q,q)
        a('v_rcp_f32 v%d, v%d'%(q,q))
        bf16r(a,m,m)
        for n in range(0,len(x),2):
            r0,r1=x[n],x[n+1]
            a('v_sub_f32 v%d, v%d, v%d'%(r0,r0,m)); a('v_sub_f32 v%d, v%d, v%d'%(r1,r1,m))
            a('v_cvt_pk_bf16_f32 v%d, v%d, v%d'%(r,r0,r1))
            a('v_lshlrev_b32 v%d, 16, v%d'%(r0,r)); a('v_and_b32 v%d, 0xffff0000, v%d'%(r1,r))
            a('v_mul_f32 v%d, v%d, v%d'%(r0,r0,q)); a('v_mul_f32 v%d, v%d, v%d'%(r1,r1,q))
            a('v_cvt_pk_bf16_f32 v%d, v%d, v%d'%(r,r0,r1))
            a('v_lshlrev_b32 v%d, 16, v%d'%(r0,r)); a('v_and_b32 v%d, 0xffff0000, v%d'%(r1,r))
        pool.rel(q); pool.rel(r); pool.rel(m); pool.rel(s)

def lds_read_c(a,pool,vaddr,offs):
    xs=[]
    for o in offs:
        b=pool.alloc(2,2)
        a('ds_read_b64 v[%d:%d], v%d offset:%d'%(b,b+1,vaddr,o))
        xs.append(C(R(b),R(b+1)))
    return xs
def lds_write_c(a,pool,g,vaddr,off,x):
    assert x.re.s>0 and x.im.s>0 and x.im.r==x.re.r+1 and x.re.r%2==0
    a('ds_write_b64 v%d, v[%d:%d] offset:%d'%(vaddr,x.re.r,x.im.r,off))
    g.relc(x)

def setup_consts(a):
    a('s_mov_b32 s60, 0x%x'%SQ); a('s_mov_b32 s61, 0x%x'%C1); a('s_mov_b32 s62, 0x%x'%C2)
    a('s_mov_b32 s63, 0x%x'%S1); a('s_mov_b32 s64, 0x%x'%S2)
    a('s_mov_b32 s68, 0x07060302'); a('s_mov_b32 s65, 0x%x'%f2u(np.float32(1/640.))); a('s_mov_b32 s66, 0x%x'%f2u(640.0))
K5={'c1':'s61','c2':'s62','s1':'s63','s2':'s64'}
L0=0; L1=22528; ROW_LDS=L1+27136

def row_thread_ids(a,pool):
    p=pool.alloc(); i=pool.alloc(); k1=pool.alloc(); u=pool.alloc()
    a('v_mul_u32_u24 v%d, 205, v0'%p); a('v_lshrrev_b32 v%d, 14, v%d'%(p,p))
    a('v_mul_u32_u24 v%d, 80, v%d'%(i,p)); a('v_sub_u32 v%d, v0, v%d'%(i,i))
    a('v_mul_u32_u24 v%d, 205, v%d'%(k1,i)); a('v_lshrrev_b32 v%d, 11, v%d'%(k1,k1))
    a('v_mul_u32_u24 v%d, 10, v%d'%(u,k1)); a('v_sub_u32 v%d, v%d, v%d'%(u,i,u))
    return p,i,k1,u

def gen_k1():
    a=Asm(); pool=Pool(1,128); g=FFTGen(a,pool)
    a('s_cmp_ge_u32 s2, 384'); a('s_cbranch_scc1 .Lk1_end')
    a('s_load_dwordx8 s[16:23], s[0:1], 0')
    a('s_load_dwordx2 s[24:25], s[0:1], 80')
    table_srd(a,44,'k1')
    setup_consts(a)
    a('v_lshrrev_b32 v1, 6, v0')
    a('s_waitcnt lgkmcnt(0)')
    a('v_readfirstlane_b32 s3, v1')
    srd(a,40,24,WS_SIZE)
    a('s_cmp_ge_u32 s2, 256'); a('s_cbranch_scc1 .Lk1_wt')
    srd(a,36,16,2048*1280)
    st=Stamper(a,0); st()
    p,i,k1,u=row_thread_ids(a,pool)
    t=pool.alloc()
    a('v_lshlrev_b32 v%d, 4, v%d'%(t,i)); tw1=load_tw(a,pool,t,RT1,80,44)
    a('v_lshlrev_b32 v%d, 4, v%d'%(t,u)); tw2=load_tw(a,pool,t,RT2,10,44)
    pool.rel(t)
    a('s_cmp_ge_u32 s3, 4'); a('s_cbranch_scc1 .Lk1_b0')
    lane=pool.alloc(); va=pool.alloc()
    a('v_and_b32 v%d, 63, v0'%lane)
    a('s_lshl_b32 s4, s2, 3'); a('s_lshl_b32 s5, s3, 1'); a('s_add_u32 s4, s4, s5'); a('s_mul_i32 s4, s4, 1280')
    a('v_mul_u32_u24 v%d, 20, v%d'%(va,lane))
    raw=pool.alloc(12,4)
    a('buffer_load_dwordx4 v[%d:%d], v%d, s[36:39], s4 offen'%(raw,raw+3,va))
    a('buffer_load_dword v%d, v%d, s[36:39], s4 offen offset:16'%(raw+4,va))
    a('buffer_load_dwordx4 v[%d:%d], v%d, s[36:39], s4 offen offset:1280'%(raw+8,raw+11,va))
    a('buffer_load_dword v%d, v%d, s[36:39], s4 offen offset:1296'%(raw+5,va))
    xs=pool.alloc(20,4)
    a('s_waitcnt vmcnt(0)'); st()
    srcA=[raw,raw+1,raw+2,raw+3,raw+4]; srcB=[raw+8,raw+9,raw+10,raw+11,raw+5]
    for d in range(5):
        a('v_lshlrev_b32 v%d, 16, v%d'%(xs+4*d,srcA[d])); a('v_and_b32 v%d, 0xffff0000, v%d'%(xs+4*d+2,srcA[d]))
        a('v_lshlrev_b32 v%d, 16, v%d'%(xs+4*d+1,srcB[d])); a('v_and_b32 v%d, 0xffff0000, v%d'%(xs+4*d+3,srcB[d]))
    pool.rel(raw,12)
    rowA=[xs+2*j for j in range(10)]; rowB=[xs+2*j+1 for j in range(10)]
    layernorm_rows(a,pool,[rowA,rowB],'s65','s66',70)
    a('s_mul_i32 s5, s3, 5120')
    a('v_mul_u32_u24 v%d, 80, v%d'%(va,lane)); a('v_add_u32 v%d, s5, v%d'%(va,va))
    for d in range(5):
        a('ds_write_b128 v%d, v[%d:%d] offset:%d'%(va,xs+4*d,xs+4*d+3,L0+16*d))
    pool.rel(xs,20); pool.rel(lane); pool.rel(va)
    a.label('.Lk1_b0')
    a('s_waitcnt lgkmcnt(0)'); a('s_barrier'); st()
    ad=pool.alloc(); t=pool.alloc()
    a('v_mul_u32_u24 v%d, 640, v%d'%(ad,p)); a('v_add_u32 v%d, v%d, v%d'%(ad,ad,i)); a('v_lshlrev_b32 v%d, 3, v%d'%(ad,ad))
    x=lds_read_c(a,pool,ad,[L0+640*j for j in range(8)])
    a('v_mul_u32_u24 v%d, 848, v%d'%(ad,p)); a('v_add_u32 v%d, v%d, v%d'%(ad,ad,i)); a('v_lshlrev_b32 v%d, 3, v%d'%(ad,ad))
    a('s_waitcnt vmcnt(0) lgkmcnt(0)')
    y=g.dft8(x,False,'s60')
    for k in range(8):
        z = g.topair(y[k]) if k==0 else g.cmul_tw(y[k],tw1+2*k,tw1+2*k+1,False)
        lds_write_c(a,pool,g,ad,L1+848*k,z)
    a('s_waitcnt lgkmcnt(0)'); a('s_barrier')
    st()
    a('v_mul_u32_u24 v%d, 848, v%d'%(ad,p)); a('v_mul_u32_u24 v%d, 106, v%d'%(t,k1))
    a('v_add3_u32 v%d, v%d, v%d, v%d'%(ad,ad,t,u)); a('v_lshlrev_b32 v%d, 3, v%d'%(ad,ad))
    x=lds_read_c(a,pool,ad,[L1+80*j for j in range(8)])
    a('v_mul_u32_u24 v%d, 704, v%d'%(ad,p)); a('v_mul_u32_u24 v%d, 11, v%d'%(t,k1))
    a('v_add3_u32 v%d, v%d, v%d, v%d'%(ad,ad,t,u)); a('v_lshlrev_b32 v%d, 3, v%d'%(ad,ad))
    a('s_waitcnt lgkmcnt(0)')
    y=g.dft8(x,False,'s60')
    for k in range(8):
        z = g.topair(y[k]) if k==0 else g.cmul_tw(y[k],tw2+2*k,tw2+2*k+1,False)
        lds_write_c(a,pool,g,ad,L0+704*k,z)
    pool.rel(tw1,16); pool.rel(tw2,16)
    a('s_waitcnt lgkmcnt(0)'); a('s_barrier')
    st()
    a('s_cmp_ge_u32 s3, 4'); a('s_cbranch_scc1 .Lk1_b3')
    a('v_and_b32 v%d, 63, v0'%t)
    a('s_mul_i32 s5, s3, 704*8')
    a('v_mul_u32_u24 v%d, 88, v%d'%(ad,t)); a('v_add_u32 v%d, s5, v%d'%(ad,ad))
    x=lds_read_c(a,pool,ad,[L0+8*uu for uu in range(10)])
    a('s_mul_i32 s5, s3, 648*8')
    a('v_lshlrev_b32 v%d, 3, v%d'%(ad,t)); a('v_add_u32 v%d, s5, v%d'%(ad,ad))
    a('s_waitcnt lgkmcnt(0)')
    y=g.dft10(x,False,K5)
    for k in range(10):
        z=g.topair(y[k]); lds_write_c(a,pool,g,ad,L1+512*k,z)
    a.label('.Lk1_b3')
    a('s_waitcnt lgkmcnt(0)'); a('s_barrier')
    st()
    a('s_mul_i32 s4, s2, %d'%XF_BLK)
    idx=pool.alloc(); kk=pool.alloc(); a2=pool.alloc()
    for it in range(5):
        a('v_add_u32 v%d, %d, v0'%(idx,320*it))
        a('v_lshrrev_b32 v%d, 2, v%d'%(kk,idx)); a('v_and_b32 v%d, 3, v%d'%(t,idx))
        a('v_mul_u32_u24 v%d, 648, v%d'%(t,t))
        a('v_add_u32 v%d, v%d, v%d'%(ad,t,kk))
        a('v_sub_u32 v%d, 640, v%d'%(a2,kk))
        a('v_cmp_eq_u32 vcc, 0, v%d'%kk)
        a('v_cndmask_b32 v%d, v%d, 0, vcc'%(a2,a2))
        a('v_add_u32 v%d, v%d, v%d'%(a2,a2,t))
        a('v_lshlrev_b32 v%d, 3, v%d'%(ad,ad)); a('v_lshlrev_b32 v%d, 3, v%d'%(a2,a2))
        zz=pool.alloc(2,2); ww=pool.alloc(2,2); o=pool.alloc(4,4)
        a('ds_read_b64 v[%d:%d], v%d offset:%d'%(zz,zz+1,ad,L1))
        a('ds_read_b64 v[%d:%d], v%d offset:%d'%(ww,ww+1,a2,L1))
        a('v_lshlrev_b32 v%d, 4, v%d'%(idx,idx))
        a('s_waitcnt lgkmcnt(0)')
        a('v_add_f32 v%d, v%d, v%d'%(o,zz,ww)); a('v_sub_f32 v%d, v%d, v%d'%(o+1,zz+1,ww+1))
        a('v_add_f32 v%d, v%d, v%d'%(o+2,zz+1,ww+1)); a('v_sub_f32 v%d, v%d, v%d'%(o+3,ww,zz))
        if it==4:
            a('v_cmp_gt_u32 vcc, %d, v%d'%(1284*16,idx))
            a('s_and_saveexec_b64 s[6:7], vcc')
        a('buffer_store_dwordx4 v[%d:%d], v%d, s[40:43], s4 offen'%(o,o+3,idx))
        if it==4:
            a('s_mov_b64 exec, s[6:7]')
        pool.rel(zz,2); pool.rel(ww,2); pool.rel(o,4)
    st(); a('s_waitcnt vmcnt(0)'); st(); st.dump()
    a('s_endpgm')
    a.label('.Lk1_wt')
    pool2=Pool(1,128)
    srd(a,48,18,2048*642); srd(a,52,20,2048*642)
    a('s_sub_u32 s4, s2, 256')
    a('s_lshr_b32 s5, s4, 4')
    a('s_lshr_b32 s6, s4, 1'); a('s_and_b32 s6, s6, 7')
    a('s_lshl_b32 s6, s6, 3'); a('s_add_u32 s5, s5, s6')
    a('s_and_b32 s6, s4, 1'); a('s_lshl_b32 s6, s6, 8'); a('s_add_u32 s5, s5, s6')
    a('s_mul_i32 s5, s5, 642')
    for rnd in range(2):
        va=pool2.alloc(); vo=pool2.alloc(); d=pool2.alloc(16,4); e=pool2.alloc(16,4)
        if rnd==0: a('v_lshlrev_b32 v%d, 1, v0'%va); a('v_lshlrev_b32 v%d, 13, v0'%vo)
        else:
            a('v_cmp_eq_u32 vcc, 0, v0'); a('s_and_saveexec_b64 s[6:7], vcc'); a('s_cbranch_execz .Lk1_wt_done')
            a('v_mov_b32 v%d, 640'%va); a('v_mov_b32 v%d, %d'%(vo,320*8192))
        for q in range(16):
            a('s_add_u32 s8, s5, %d'%((64*(q>>2)+512*(q&3))*642))
            a('buffer_load_ushort v%d, v%d, s[48:51], s8 offen'%(d+q,va))
            a('buffer_load_ushort v%d, v%d, s[52:55], s8 offen'%(e+q,va))
        a('s_lshl_b32 s8, s4, 6'); a('s_add_u32 s8, s8, %d'%WT_OFF)
        a('s_waitcnt vmcnt(0)')
        for q in range(16):
            a('v_lshl_or_b32 v%d, v%d, 16, v%d'%(d+q,e+q,d+q))
        for q in range(4):
            a('buffer_store_dwordx4 v[%d:%d], v%d, s[40:43], s8 offen offset:%d'%(d+4*q,d+4*q+3,vo,16*q))
        pool2.rel(va); pool2.rel(vo); pool2.rel(d,16); pool2.rel(e,16)
    a.label('.Lk1_wt_done')
    a.label('.Lk1_end')
    a('s_endpgm')
    kernels.append(('k1_rowfft_kernel',a.text(),max(pool.hi,pool2.hi),102))
    launches.append(('k1_rowfft_kernel',384,320,ROW_LDS))


NCOL_WG=321
TJOBS=240
CA=0; CB=18432; COL_LDS=CB+18432
SCALE=np.float32(0.5/(2048.0*640.0))
def gen_k2():
    a=Asm(); pool=Pool(1,128); g=FFTGen(a,pool)
    a('s_cmp_ge_u32 s2, %d'%(NCOL_WG+TJOBS)); a('s_cbranch_scc1 .Lk2_end')
    a('s_load_dwordx4 s[16:19], s[0:1], 32')
    a('s_load_dwordx2 s[20:21], s[0:1], 48')
    a('s_load_dwordx2 s[24:25], s[0:1], 80')
    table_srd(a,44,'k2')
    setup_consts(a)
    a('s_waitcnt lgkmcnt(0)')
    srd(a,40,24,WS_SIZE)
    a('s_cmp_ge_u32 s2, %d'%NCOL_WG); a('s_cbranch_scc1 .Lk2_tr')
    st=Stamper(a,1); st()
    a('s_and_b32 s4, s2, 7'); a('s_lshl_b32 s4, s4, 1')
    a('s_lshr_b32 s5, s2, 3'); a('s_and_b32 s5, s5, 1'); a('s_add_u32 s4, s4, s5')
    a('s_and_b32 s5, s2, 0xfffffff0'); a('s_add_u32 s4, s4, s5')
    va=pool.alloc(); t=pool.alloc(); ad=pool.alloc()
    a('v_lshrrev_b32 v%d, 3, v0'%va); a('v_mul_u32_u24 v%d, %d, v%d'%(va,XF_BLK,va))
    a('v_and_b32 v%d, 7, v0'%t); a('v_lshl_add_u32 v%d, v%d, 3, v%d'%(va,t,va))
    a('s_lshl_b32 s5, s4, 6')
    for j in range(8):
        a('s_add_u32 s%d, s5, %d'%(8+j,XF_OFF+j*32*XF_BLK))
    x=[]
    for j in range(8):
        b=pool.alloc(2,2)
        a('buffer_load_dwordx2 v[%d:%d], v%d, s[40:43], s%d offen'%(b,b+1,va,8+j))
        x.append(C(R(b),R(b+1)))
    a('v_lshlrev_b32 v%d, 4, v0'%t); tw1=load_tw(a,pool,t,CT1,256,44)
    a('v_and_b32 v%d, 31, v0'%t); a('v_lshlrev_b32 v%d, 4, v%d'%(t,t)); tw2=load_tw(a,pool,t,CT2,32,44)
    a('v_and_b32 v%d, 3, v0'%t); a('v_lshlrev_b32 v%d, 4, v%d'%(t,t)); tw3=load_tw(a,pool,t,CT3,4,44)
    wv=pool.alloc(8,4)
    a('s_lshl_b32 s5, s4, 13'); a('s_add_u32 s5, s5, %d'%WT_OFF)
    a('v_lshlrev_b32 v%d, 5, v0'%t)
    a('buffer_load_dwordx4 v[%d:%d], v%d, s[40:43], s5 offen'%(wv,wv+3,t))
    a('buffer_load_dwordx4 v[%d:%d], v%d, s[40:43], s5 offen offset:16'%(wv+4,wv+7,t))
    a1=pool.alloc(); a2=pool.alloc(); a3=pool.alloc(); a4=pool.alloc(); a5=pool.alloc(); a6=pool.alloc()
    a('v_lshlrev_b32 v%d, 3, v0'%a1)
    a('v_lshrrev_b32 v%d, 5, v0'%t); a('v_lshlrev_b32 v%d, 8, v%d'%(a2,t)); a('v_and_b32 v%d, 31, v0'%ad)
    a('v_add_u32 v%d, v%d, v%d'%(a2,a2,ad)); a('v_lshlrev_b32 v%d, 3, v%d'%(a2,a2))
    a('v_mul_u32_u24 v%d, 288, v%d'%(a3,t)); a('v_add_u32 v%d, v%d, v%d'%(a3,a3,ad)); a('v_lshlrev_b32 v%d, 3, v%d'%(a3,a3))
    a('v_lshrrev_b32 v%d, 2, v0'%t); a('v_mul_u32_u24 v%d, 36, v%d'%(a4,t)); a('v_and_b32 v%d, 3, v0'%ad)
    a('v_lshlrev_b32 v%d, 3, v%d'%(a6,ad)); a('v_add_u32 v%d, v%d, v%d'%(a6,a6,a4)); a('v_lshlrev_b32 v%d, 3, v%d'%(a6,a6))
    a('v_add_u32 v%d, v%d, v%d'%(a4,a4,ad)); a('v_lshlrev_b32 v%d, 3, v%d'%(a4,a4))
    pool.rel(a5)
    a('s_waitcnt vmcnt(22)' if False else 's_waitcnt vmcnt(10)')
    st()
    y=g.dft8(x,False,'s60')
    for k in range(8):
        z = g.topair(y[k]) if k==0 else g.cmul_tw(y[k],tw1+2*k,tw1+2*k+1,False)
        lds_write_c(a,pool,g,a1,CA+2048*k,z)
    a('s_waitcnt lgkmcnt(0)'); a('s_barrier')
    st()
    x=lds_read_c(a,pool,a2,[CA+256*j for j in range(8)])
    a('s_waitcnt vmcnt(6) lgkmcnt(0)')
    y=g.dft8(x,False,'s60')
    for k in range(8):
        z = g.topair(y[k]) if k==0 else g.cmul_tw(y[k],tw2+2*k,tw2+2*k+1,False)
        lds_write_c(a,pool,g,a3,CB+288*k,z)
    a('s_waitcnt lgkmcnt(0)'); a('s_barrier')
    x=lds_read_c(a,pool,a4,[CB+32*j for j in range(8)])
    a('s_waitcnt vmcnt(2) lgkmcnt(0)')
    y=g.dft8(x,False,'s60')
    for k in range(8):
        z = g.topair(y[k]) if k==0 else g.cmul_tw(y[k],tw3+2*k,tw3+2*k+1,False)
        lds_write_c(a,pool,g,a4,CA+32*k,z)
    a('s_waitcnt lgkmcnt(0)'); a('s_barrier')
    st()
    x=lds_read_c(a,pool,a6,[CA+8*e for e in range(8)])
    a('s_mov_b32 s67, 0x%x'%f2u(SCALE))
    a('s_waitcnt vmcnt(0) lgkmcnt(0)')
    ya=g.dft4(x[0:4],False); yb=g.dft4(x[4:8],False)
    Y=[]
    wr=pool.alloc(); wi=pool.alloc()
    for e,yy in enumerate(ya+yb):
        a('v_lshlrev_b32 v%d, 16, v%d'%(wr,wv+e)); a('v_and_b32 v%d, 0xffff0000, v%d'%(wi,wv+e))
        a('v_mul_f32 v%d, s67, v%d'%(wr,wr)); a('v_mul_f32 v%d, s67, v%d'%(wi,wi))
        Y.append(g.cmul_tw(yy,wr,wi,False))
    pool.rel(wr); pool.rel(wi); pool.rel(wv,8)
    st()
    za=g.dft4(Y[0:4],True); zb=g.dft4(Y[4:8],True)
    for e,zz in enumerate(za+zb):
        z=g.topair(zz); lds_write_c(a,pool,g,a6,CB+8*e,z)
    a('s_waitcnt lgkmcnt(0)'); a('s_barrier')
    x=lds_read_c(a,pool,a4,[CB+32*k for k in range(8)])
    a('s_waitcnt lgkmcnt(0)')
    x=[x[0]]+[g.cmul_tw(x[k],tw3+2*k,tw3+2*k+1,True) for k in range(1,8)]
    y=g.dft8(x,True,'s60')
    for j in range(8):
        z=g.topair(y[j]); lds_write_c(a,pool,g,a4,CA+32*j,z)
    a('s_waitcnt lgkmcnt(0)'); a('s_barrier')
    x=lds_read_c(a,pool,a3,[CA+288*k for k in range(8)])
    a('s_waitcnt lgkmcnt(0)')
    x=[x[0]]+[g.cmul_tw(x[k],tw2+2*k,tw2+2*k+1,True) for k in range(1,8)]
    y=g.dft8(x,True,'s60')
    for j in range(8):
        z=g.topair(y[j]); lds_write_c(a,pool,g,a2,CB+256*j,z)
    a('s_waitcnt lgkmcnt(0)'); a('s_barrier')
    st()
    x=lds_read_c(a,pool,a1,[CB+2048*k for k in range(8)])
    a('s_waitcnt lgkmcnt(0)')
    x=[x[0]]+[g.cmul_tw(x[k],tw1+2*k,tw1+2*k+1,True) for k in range(1,8)]
    y=g.dft8(x,True,'s60')
    for j in range(8):
        z=g.topair(y[j])
        a('buffer_store_dwordx2 v[%d:%d], v%d, s[40:43], s%d offen'%(z.re.r,z.im.r,va,8+j))
        g.relc(z)
    st(); a('s_waitcnt vmcnt(0)'); st(); st.dump()
    a('s_endpgm')
    a.label('.Lk2_tr')
    p2=Pool(1,128)
    a('s_sub_u32 s4, s2, %d'%NCOL_WG)
    a('s_cmp_ge_u32 s4, 120'); a('s_cbranch_scc1 .Lk2_tr2')
    srd(a,36,16,640*3072)
    a('s_mul_i32 s5, s4, 6554'); a('s_lshr_b32 s5, s5, 16')
    a('s_mul_i32 s6, s5, 10'); a('s_sub_u32 s6, s4, s6')
    a('s_mov_b32 s7, 3072')
    a('s_mov_b32 s8, 1280')
    a('s_mov_b32 s9, %d'%W1T_OFF)
    a('s_branch .Lk2_trc')
    a.label('.Lk2_tr2')
    srd(a,36,20,1536*1280)
    a('s_sub_u32 s4, s4, 120')
    a('s_mul_i32 s5, s4, 2731'); a('s_lshr_b32 s5, s5, 16')
    a('s_mul_i32 s6, s5, 24'); a('s_sub_u32 s6, s4, s6')
    a('s_mov_b32 s7, 1280'); a('s_mov_b32 s8, 3072'); a('s_mov_b32 s9, %d'%W2T_OFF)
    a.label('.Lk2_trc')
    va=p2.alloc(); t=p2.alloc(); vl=p2.alloc(); d=p2.alloc(16,4)
    a('s_lshl_b32 s10, s6, 6'); a('s_mul_i32 s10, s10, s7'); a('s_lshl_b32 s11, s5, 8'); a('s_add_u32 s10, s10, s11')
    a('v_lshrrev_b32 v%d, 4, v0'%t); a('v_mul_lo_u32 v%d, v%d, s7'%(va,t))
    a('v_and_b32 v%d, 15, v0'%vl); a('v_lshl_add_u32 v%d, v%d, 4, v%d'%(va,vl,va))
    a('v_mul_u32_u24 v%d, 264, v%d'%(t,t)); a('v_lshl_add_u32 v%d, v%d, 4, v%d'%(vl,vl,t))
    a('s_lshl_b32 s11, s7, 4')
    for i in range(4):
        a('buffer_load_dwordx4 v[%d:%d], v%d, s[36:39], s10 offen'%(d+4*i,d+4*i+3,va))
        a('s_add_u32 s10, s10, s11')
    for i in range(4):
        a('s_waitcnt vmcnt(%d)'%(3-i))
        a('ds_write_b64 v%d, v[%d:%d] offset:%d'%(vl,d+4*i,d+4*i+1,16*264*i))
        a('ds_write_b64 v%d, v[%d:%d] offset:%d'%(vl,d+4*i+2,d+4*i+3,16*264*i+8))
    a('s_waitcnt lgkmcnt(0)'); a('s_barrier')
    a('v_lshrrev_b32 v%d, 1, v0'%t); a('v_and_b32 v%d, 1, v0'%va)
    a('v_mul_u32_u24 v%d, %d, v%d'%(vl,32*264,va)); a('v_lshl_add_u32 v%d, v%d, 1, v%d'%(vl,t,vl))
    e=p2.alloc(16,4)
    for kk in range(32):
        if kk%2==0: a('ds_read_u16 v%d, v%d offset:%d'%(d+kk//2,vl,264*kk))
        else: a('ds_read_u16 v%d, v%d offset:%d'%(e+kk//2,vl,264*kk))
    a('s_lshl_b32 s10, s5, 7'); a('s_mul_i32 s10, s10, s8'); a('s_add_u32 s10, s10, s9'); a('s_lshl_b32 s11, s6, 7'); a('s_add_u32 s10, s10, s11')
    a('v_mul_lo_u32 v%d, v%d, s8'%(t,t)); a('v_lshl_add_u32 v%d, v%d, 6, v%d'%(t,va,t))
    a('s_waitcnt lgkmcnt(0)')
    for q in range(16): a('v_lshl_or_b32 v%d, v%d, 16, v%d'%(d+q,e+q,d+q))
    for i in range(4):
        a('buffer_store_dwordx4 v[%d:%d], v%d, s[40:43], s10 offen offset:%d'%(d+4*i,d+4*i+3,t,16*i))
    a.label('.Lk2_end')
    a('s_endpgm')
    kernels.append(('k2_colfft_kernel',a.text(),max(pool.hi,p2.hi),102))
    launches.append(('k2_colfft_kernel',NCOL_WG+TJOBS,256,COL_LDS))


def gen_k3():
    a=Asm(); pool=Pool(1,128); g=FFTGen(a,pool)
    a('s_cmp_ge_u32 s2, 256'); a('s_cbranch_scc1 .Lk3_end')
    a('s_load_dwordx2 s[16:17], s[0:1], 0')
    a('s_load_dwordx2 s[24:25], s[0:1], 80')
    table_srd(a,44,'k3')
    setup_consts(a)
    a('v_lshrrev_b32 v1, 6, v0')
    a('s_waitcnt lgkmcnt(0)')
    a('v_readfirstlane_b32 s3, v1')
    srd(a,40,24,WS_SIZE); srd(a,36,16,2048*1280)
    st=Stamper(a,2); st()
    a('s_mul_i32 s4, s2, %d'%XF_BLK)
    idx=pool.alloc(); yv=pool.alloc(20,4)
    for it in range(5):
        a('v_add_u32 v%d, %d, v0'%(idx,320*it)); a('v_lshlrev_b32 v%d, 4, v%d'%(idx,idx))
        a('buffer_load_dwordx4 v[%d:%d], v%d, s[40:43], s4 offen'%(yv+4*it,yv+4*it+3,idx))
    p,i,k1,u=row_thread_ids(a,pool)
    t=pool.alloc(); ad=pool.alloc(); a2=pool.alloc(); kk=pool.alloc()
    a('v_lshlrev_b32 v%d, 4, v%d'%(t,i)); tw1=load_tw(a,pool,t,RT1,80,44)
    a('v_lshlrev_b32 v%d, 4, v%d'%(t,u)); tw2=load_tw(a,pool,t,RT2,10,44)
    lane=pool.alloc(); va=pool.alloc(); raw=pool.alloc(12,4)
    a('v_and_b32 v%d, 63, v0'%lane)
    a('s_lshl_b32 s5, s2, 3'); a('s_and_b32 s6, s3, 3'); a('s_lshl_b32 s6, s6, 1'); a('s_add_u32 s5, s5, s6'); a('s_mul_i32 s5, s5, 1280')
    a('v_mul_u32_u24 v%d, 20, v%d'%(va,lane))
    a('buffer_load_dwordx4 v[%d:%d], v%d, s[36:39], s5 offen'%(raw,raw+3,va))
    a('buffer_load_dword v%d, v%d, s[36:39], s5 offen offset:16'%(raw+4,va))
    a('buffer_load_dwordx4 v[%d:%d], v%d, s[36:39], s5 offen offset:1280'%(raw+8,raw+11,va))
    a('buffer_load_dword v%d, v%d, s[36:39], s5 offen offset:1296'%(raw+5,va))
    a('s_waitcnt vmcnt(12)'); st()
    for it in range(5):
        a('v_add_u32 v%d, %d, v0'%(idx,320*it))
        a('v_lshrrev_b32 v%d, 2, v%d'%(kk,idx)); a('v_and_b32 v%d, 3, v%d'%(t,idx))
        a('v_mul_u32_u24 v%d, 648, v%d'%(t,t))
        a('v_add_u32 v%d, v%d, v%d'%(ad,t,kk)); a('v_sub_u32 v%d, 640, v%d'%(a2,kk)); a('v_add_u32 v%d, v%d, v%d'%(a2,a2,t))
        a('v_lshlrev_b32 v%d, 3, v%d'%(ad,ad)); a('v_lshlrev_b32 v%d, 3, v%d'%(a2,a2))
        y0=yv+4*it
        if it in (0,4):
            a('v_cmp_eq_u32 vcc, %d, v%d'%(0 if it==0 else 320,kk))
            a('v_cndmask_b32 v%d, v%d, 0, vcc'%(y0+1,y0+1)); a('v_cndmask_b32 v%d, v%d, 0, vcc'%(y0+3,y0+3))
        z=pool.alloc(2,2); w=pool.alloc(2,2)
        a('v_sub_f32 v%d, v%d, v%d'%(z,y0,y0+3)); a('v_add_f32 v%d, v%d, v%d'%(z+1,y0+1,y0+2))
        a('v_add_f32 v%d, v%d, v%d'%(w,y0,y0+3)); a('v_sub_f32 v%d, v%d, v%d'%(w+1,y0+2,y0+1))
        if it==4:
            a('v_cmp_gt_u32 vcc, 1284, v%d'%idx); a('s_and_saveexec_b64 s[6:7], vcc')
        a('ds_write_b64 v%d, v[%d:%d] offset:%d'%(ad,z,z+1,L1))
        a('ds_write_b64 v%d, v[%d:%d] offset:%d'%(a2,w,w+1,L1))
        if it==4: a('s_mov_b64 exec, s[6:7]')
        pool.rel(z,2); pool.rel(w,2)
    pool.rel(yv,20); pool.rel(idx); pool.rel(kk); pool.rel(a2)
    a('s_waitcnt lgkmcnt(0)'); a('s_barrier')
    st()
    a('s_cmp_ge_u32 s3, 4'); a('s_cbranch_scc1 .Lk3_b1')
    a('s_mul_i32 s6, s3, 648*8')
    a('v_lshlrev_b32 v%d, 3, v%d'%(ad,lane)); a('v_add_u32 v%d, s6, v%d'%(ad,ad))
    x=lds_read_c(a,pool,ad,[L1+512*k for k in range(10)])
    a('s_mul_i32 s6, s3, 704*8')
    a('v_mul_u32_u24 v%d, 88, v%d'%(ad,lane)); a('v_add_u32 v%d, s6, v%d'%(ad,ad))
    a('s_waitcnt lgkmcnt(0)')
    y=g.dft10(x,True,K5)
    for uu in range(10):
        z=g.topair(y[uu]); lds_write_c(a,pool,g,ad,L0+8*uu,z)
    a.label('.Lk3_b1')
    a('s_waitcnt lgkmcnt(0)'); a('s_barrier')
    st()
    a('v_mul_u32_u24 v%d, 704, v%d'%(ad,p)); a('v_mul_u32_u24 v%d, 11, v%d'%(t,k1))
    a('v_add3_u32 v%d, v%d, v%d, v%d'%(ad,ad,t,u)); a('v_lshlrev_b32 v%d, 3, v%d'%(ad,ad))
    x=lds_read_c(a,pool,ad,[L0+704*k for k in range(8)])
    a('v_mul_u32_u24 v%d, 848, v%d'%(ad,p)); a('v_mul_u32_u24 v%d, 106, v%d'%(t,k1))
    a('v_add3_u32 v%d, v%d, v%d, v%d'%(ad,ad,t,u)); a('v_lshlrev_b32 v%d, 3, v%d'%(ad,ad))
    a('s_waitcnt vmcnt(4) lgkmcnt(0)')
    x=[x[0]]+[g.cmul_tw(x[k],tw2+2*k,tw2+2*k+1,True) for k in range(1,8)]
    y=g.dft8(x,True,'s60')
    for j in range(8):
        z=g.topair(y[j]); lds_write_c(a,pool,g,ad,L1+80*j,z)
    a('s_waitcnt lgkmcnt(0)'); a('s_barrier')
    st()
    a('v_mul_u32_u24 v%d, 848, v%d'%(ad,p)); a('v_add_u32 v%d, v%d, v%d'%(ad,ad,i)); a('v_lshlrev_b32 v%d, 3, v%d'%(ad,ad))
    x=lds_read_c(a,pool,ad,[L1+848*k for k in range(8)])
    a('v_mul_u32_u24 v%d, 640, v%d'%(ad,p)); a('v_add_u32 v%d, v%d, v%d'%(ad,ad,i)); a('v_lshlrev_b32 v%d, 3, v%d'%(ad,ad))
    a('s_waitcnt lgkmcnt(0)')
    x=[x[0]]+[g.cmul_tw(x[k],tw1+2*k,tw1+2*k+1,True) for k in range(1,8)]
    y=g.dft8(x,True,'s60')
    for j in range(8):
        z=g.topair(y[j]); lds_write_c(a,pool,g,ad,L0+640*j,z)
    pool.rel(tw1,16); pool.rel(tw2,16)
    a('s_waitcnt lgkmcnt(0)'); a('s_barrier')
    st()
    a('s_cmp_ge_u32 s3, 4'); a('s_cbranch_scc1 .Lk3_end')
    ys=pool.alloc(20,4)
    a('s_mul_i32 s6, s3, 5120')
    a('v_mul_u32_u24 v%d, 80, v%d'%(ad,lane)); a('v_add_u32 v%d, s6, v%d'%(ad,ad))
    for d in range(5):
        a('ds_read_b128 v[%d:%d], v%d offset:%d'%(ys+4*d,ys+4*d+3,ad,L0+16*d))
    a('s_waitcnt vmcnt(0) lgkmcnt(0)')
    srcA=[raw,raw+1,raw+2,raw+3,raw+4]; srcB=[raw+8,raw+9,raw+10,raw+11,raw+5]
    hp=pool.alloc(12,4)
    hpA=[hp,hp+1,hp+2,hp+3,hp+4]; hpB=[hp+8,hp+9,hp+10,hp+11,hp+5]
    t2=pool.alloc()
    for d in range(5):
        for (src,dst,o) in ((srcA[d],hpA[d],0),(srcB[d],hpB[d],1)):
            e0=ys+4*d+o; e1=ys+4*d+2+o
            a('v_cvt_pk_bf16_f32 v%d, v%d, v%d'%(t,e0,e1))
            a('v_lshlrev_b32 v%d, 16, v%d'%(e0,t)); a('v_and_b32 v%d, 0xffff0000, v%d'%(e1,t))
            a('v_lshlrev_b32 v%d, 16, v%d'%(t,src)); a('v_and_b32 v%d, 0xffff0000, v%d'%(t2,src))
            a('v_add_f32 v%d, v%d, v%d'%(e0,e0,t)); a('v_add_f32 v%d, v%d, v%d'%(e1,e1,t2))
            a('v_cvt_pk_bf16_f32 v%d, v%d, v%d'%(dst,e0,e1))
            a('v_lshlrev_b32 v%d, 16, v%d'%(e0,dst)); a('v_and_b32 v%d, 0xffff0000, v%d'%(e1,dst))
    a('s_add_u32 s6, s5, %d'%H_OFF)
    a('buffer_store_dwordx4 v[%d:%d], v%d, s[40:43], s6 offen'%(hp,hp+3,va))
    a('buffer_store_dword v%d, v%d, s[40:43], s6 offen offset:16'%(hp+4,va))
    a('buffer_store_dwordx4 v[%d:%d], v%d, s[40:43], s6 offen offset:1280'%(hp+8,hp+11,va))
    a('buffer_store_dword v%d, v%d, s[40:43], s6 offen offset:1296'%(hp+5,va))
    st()
    rowA=[ys+2*j for j in range(10)]; rowB=[ys+2*j+1 for j in range(10)]
    layernorm_rows(a,pool,[rowA,rowB],'s65','s66',70)
    for d in range(5):
        for (dst,o) in ((srcA[d],0),(srcB[d],1)):
            e0=ys+4*d+o; e1=ys+4*d+2+o
            a('v_perm_b32 v%d, v%d, v%d, s68'%(dst,e1,e0))
    a('s_add_u32 s6, s5, %d'%NRM_OFF)
    a('buffer_store_dwordx4 v[%d:%d], v%d, s[40:43], s6 offen'%(raw,raw+3,va))
    a('buffer_store_dword v%d, v%d, s[40:43], s6 offen offset:16'%(raw+4,va))
    a('buffer_store_dwordx4 v[%d:%d], v%d, s[40:43], s6 offen offset:1280'%(raw+8,raw+11,va))
    a('buffer_store_dword v%d, v%d, s[40:43], s6 offen offset:1296'%(raw+5,va))
    st(); a('s_waitcnt vmcnt(0)'); st(); st.dump()
    a.label('.Lk3_end')
    a('s_endpgm')
    kernels.append(('k3_rowifft_kernel',a.text(),pool.hi,102))
    launches.append(('k3_rowifft_kernel',256,320,ROW_LDS))


def gen_gemm(name, which):
    a=Asm(); pool=Pool(1,200)
    if which==1:
        BM,BN,KT,NS=128,96,10,5; RS=1280; nMt,nNt=4,3
        GR_ACT,GR_W=16,12; SUB=1
        ACT_SRC,W_SRC=NRM_OFF,W1T_OFF
        NTN=16; NWG=256
    else:
        BM,BN,KT,NS=64,80,12,4; RS=3072; nMt,nNt=2,5
        GR_ACT,GR_W=8,10; SUB=2
        ACT_SRC,W_SRC=ACT_OFF,W2T_OFF
        NTN=8; NWG=256
    SUBB=(BM+BN)*128
    STB=SUBB*SUB
    NG=(GR_ACT+GR_W)*SUB
    GPW=NG//4
    assert NG%4==0
    tag=name[:2]
    a('s_cmp_ge_u32 s2, %d'%NWG); a('s_cbranch_scc1 .L%s_end'%tag)
    a('s_load_dwordx2 s[16:17], s[0:1], %d'%(40 if which==1 else 56))
    a('s_load_dwordx2 s[18:19], s[0:1], 64')
    a('s_load_dwordx2 s[24:25], s[0:1], 80')
    a('v_lshrrev_b32 v1, 6, v0')
    a('v_readfirstlane_b32 s3, v1')
    a('s_and_b32 s4, s2, 7'); a('s_lshr_b32 s5, s2, 3')
    if which==1:
        a('s_lshr_b32 s6, s4, 1'); a('s_lshl_b32 s6, s6, 2'); a('s_lshr_b32 s7, s5, 3'); a('s_add_u32 s6, s6, s7')
        a('s_and_b32 s7, s4, 1'); a('s_lshl_b32 s7, s7, 3'); a('s_and_b32 s8, s5, 7'); a('s_add_u32 s7, s7, s8')
    else:
        a('s_lshl_b32 s6, s4, 2'); a('s_lshr_b32 s7, s5, 3'); a('s_add_u32 s6, s6, s7')
        a('s_and_b32 s7, s5, 7')
    a('s_mul_i32 s6, s6, %d'%BM); a('s_mul_i32 s7, s7, %d'%BN)
    a('s_waitcnt lgkmcnt(0)')
    srd(a,40,24,WS_SIZE)
    srd(a,36,16,(1536 if which==1 else 640)*2)
    srd(a,32,18,2048*1280)
    st=Stamper(a,3 if which==1 else 4); st()
    lane=pool.alloc(); t=pool.alloc(); vdma=pool.alloc()
    a('v_and_b32 v%d, 63, v0'%lane)
    a('v_lshrrev_b32 v%d, 3, v%d'%(t,lane)); a('v_and_b32 v%d, 7, v%d'%(vdma,lane)); a('v_xor_b32 v%d, v%d, v%d'%(vdma,vdma,t))
    a('v_lshlrev_b32 v%d, 4, v%d'%(vdma,vdma)); a('v_mul_u32_u24 v%d, %d, v%d'%(t,RS,t)); a('v_add_u32 v%d, v%d, v%d'%(vdma,vdma,t))
    a('s_mov_b32 s14, %d'%W_SRC); a('s_mov_b32 s15, %d'%ACT_SRC)
    for q in range(GPW):
        GS=GR_ACT+GR_W
        a('s_add_u32 s8, s3, %d'%(4*q))
        if SUB==2:
            a('s_cmp_ge_u32 s8, %d'%GS); a('s_cselect_b32 s10, %d, 0'%GS); a('s_cselect_b32 s9, 128, 0')
            a('s_sub_u32 s10, s8, s10')
        else:
            a('s_mov_b32 s10, s8'); a('s_mov_b32 s9, 0')
        a('s_lshl_b32 s%d, s8, 10'%(64+q))
        a('s_cmp_ge_u32 s10, %d'%GR_ACT)
        a('s_cselect_b32 s11, s7, s6')
        a('s_cselect_b32 s12, %d, 0'%GR_ACT)
        a('s_cselect_b32 s13, s14, s15')
        a('s_sub_u32 s10, s10, s12'); a('s_lshl_b32 s10, s10, 3'); a('s_add_u32 s10, s10, s11')
        a('s_mul_i32 s10, s10, %d'%RS); a('s_add_u32 s10, s10, s13'); a('s_add_u32 s%d, s10, s9'%(48+q))
    def issue(stage):
        buf=stage%NS
        for q in range(GPW):
            a('s_add_u32 m0, s%d, %d'%(64+q,buf*STB))
            a('s_add_u32 s8, s%d, %d'%(48+q,stage*128*SUB))
            a('buffer_load_dwordx4 v%d, s[40:43], s8 offen lds'%vdma)
    for st_ in range(NS-1): issue(st_)
    st()
    fa=pool.alloc(); fb=pool.alloc(); g_=pool.alloc()
    a('v_lshrrev_b32 v%d, 4, v%d'%(g_,lane)); a('v_and_b32 v%d, 7, v%d'%(t,lane)); a('v_xor_b32 v%d, v%d, v%d'%(t,t,g_))
    a('v_lshlrev_b32 v%d, 4, v%d'%(t,t)); a('v_and_b32 v%d, 15, v%d'%(fa,lane)); a('v_lshl_add_u32 v%d, v%d, 7, v%d'%(fa,fa,t))
    if which==1:
        a('s_lshr_b32 s8, s3, 1'); a('s_mul_i32 s8, s8, %d'%(64*128)); a('s_and_b32 s9, s3, 1'); a('s_mul_i32 s9, s9, %d'%(48*128)); a('s_add_u32 s9, s9, %d'%(BM*128))
    else:
        a('s_lshr_b32 s10, s3, 1'); a('s_mul_i32 s10, s10, %d'%SUBB)
        a('s_and_b32 s8, s3, 1'); a('s_mul_i32 s8, s8, %d'%(32*128)); a('s_add_u32 s8, s8, s10'); a('s_add_u32 s9, s10, %d'%(BM*128))
    a('v_add_u32 v%d, s9, v%d'%(fb,fa)); a('v_add_u32 v%d, s8, v%d'%(fa,fa))
    acc=pool.alloc(4*nMt*nNt,4)
    for r in range(4*nMt*nNt): a('v_mov_b32 v%d, 0'%(acc+r))
    fr=[pool.alloc(4*(nMt+nNt),4) for _ in range(2)]
    ca=pool.alloc(); cb=pool.alloc()
    for it in range(KT):
        inflight=min(KT-1,it+NS-2)-it
        a('s_waitcnt vmcnt(%d)'%(inflight*GPW))
        a('s_barrier')
        if it in (0,1,5): st()
        buf=it%NS
        a('v_add_u32 v%d, %d, v%d'%(ca,buf*STB,fa)); a('v_add_u32 v%d, %d, v%d'%(cb,buf*STB,fb))
        def reads(ks):
            f=fr[ks]
            for mt in range(nMt): a('ds_read_b128 v[%d:%d], v%d offset:%d'%(f+4*mt,f+4*mt+3,ca,2048*mt))
            for nt in range(nNt): a('ds_read_b128 v[%d:%d], v%d offset:%d'%(f+4*(nMt+nt),f+4*(nMt+nt)+3,cb,2048*nt))
        reads(0)
        a('v_xor_b32 v%d, 64, v%d'%(ca,ca)); a('v_xor_b32 v%d, 64, v%d'%(cb,cb))
        reads(1)
        if it+NS-1<KT: issue(it+NS-1)
        for ks in range(2):
            a('s_waitcnt lgkmcnt(%d)'%((nMt+nNt) if ks==0 else 0))
            f=fr[ks]
            for nt in range(nNt):
                for mt in range(nMt):
                    c=acc+4*(nt*nMt+mt)
                    a('v_mfma_f32_16x16x32_bf16 v[%d:%d], v[%d:%d], v[%d:%d], v[%d:%d]'%(c,c+3,f+4*(nMt+nt),f+4*(nMt+nt)+3,f+4*mt,f+4*mt+3,c,c+3))
    for f in fr: pool.rel(f,4*(nMt+nNt))
    st()
    g4=pool.alloc(); vb=pool.alloc(); vo=pool.alloc()
    a('v_lshlrev_b32 v%d, 2, v%d'%(g4,g_))
    if which==2:
        a('s_barrier')
        a('v_lshlrev_b32 v%d, 4, v%d'%(vo,lane))
        a('s_and_b32 s8, s3, 1'); a('s_mul_i32 s8, s8, %d'%(10*1024)); a('v_add_u32 v%d, s8, v%d'%(vo,vo))
        a('s_cmp_lt_u32 s3, 2'); a('s_cbranch_scc1 .L%s_red'%tag)
        for q in range(nMt*nNt):
            a('ds_write_b128 v%d, v[%d:%d] offset:%d'%(vo,acc+4*q,acc+4*q+3,1024*q))
        a('s_waitcnt lgkmcnt(0)'); a('s_barrier'); a('s_endpgm')
        a.label('.L%s_red'%tag)
        a('s_barrier')
        tmp=pool.alloc(40,4)
        for q in range(nMt*nNt):
            a('ds_read_b128 v[%d:%d], v%d offset:%d'%(tmp+4*q,tmp+4*q+3,vo,1024*q))
        a('s_waitcnt lgkmcnt(0)')
        for r in range(40): a('v_add_f32 v%d, v%d, v%d'%(acc+r,acc+r,tmp+r))
        pool.rel(tmp,40)
        wn_off='0';
        a('s_and_b32 s8, s3, 1'); a('s_lshl_b32 s8, s8, 5'); a('s_add_u32 s6, s6, s8')
    else:
        a('s_lshr_b32 s8, s3, 1'); a('s_lshl_b32 s8, s8, 6'); a('s_add_u32 s6, s6, s8')
        a('s_and_b32 s8, s3, 1'); a('s_mul_i32 s8, s8, 48'); a('s_add_u32 s7, s7, s8')
    a('v_add_u32 v%d, s7, v%d'%(vb,g4)); a('v_lshlrev_b32 v%d, 1, v%d'%(vb,vb))
    bias=pool.alloc(2*nNt,2)
    for nt in range(nNt):
        a('buffer_load_dwordx2 v[%d:%d], v%d, s[36:39], 0 offen offset:%d'%(bias+2*nt,bias+2*nt+1,vb,32*nt))
    ORS=3072 if which==1 else 1280
    a('v_and_b32 v%d, 15, v%d'%(vo,lane)); a('v_add_u32 v%d, s6, v%d'%(vo,vo)); a('v_mul_u32_u24 v%d, %d, v%d'%(vo,ORS,vo)); a('v_add_u32 v%d, v%d, v%d'%(vo,vo,vb))
    if which==2:
        hres=pool.alloc(2*nMt*nNt,2)
        for mt in range(nMt):
            a('s_mov_b32 s8, %d'%(H_OFF+16*mt*ORS))
            for nt in range(nNt):
                q=nt*nMt+mt
                a('buffer_load_dwordx2 v[%d:%d], v%d, s[40:43], s8 offen offset:%d'%(hres+2*q,hres+2*q+1,vo,32*nt))
    a('s_waitcnt vmcnt(0)')
    bf=pool.alloc(4*nNt)
    for nt in range(nNt):
        for hh in range(2):
            a('v_lshlrev_b32 v%d, 16, v%d'%(bf+4*nt+2*hh,bias+2*nt+hh)); a('v_and_b32 v%d, 0xffff0000, v%d'%(bf+4*nt+2*hh+1,bias+2*nt+hh))
    t2=pool.alloc();
    for mt in range(nMt):
        a('s_mov_b32 s8, %d'%((ACT_OFF if which==1 else 0)+16*mt*ORS))
        for nt in range(nNt):
            q=nt*nMt+mt; c=acc+4*q
            o=pool.alloc(2,2)
            for hh in range(2):
                e0,e1=c+2*hh,c+2*hh+1
                a('v_cvt_pk_bf16_f32 v%d, v%d, v%d'%(t,e0,e1))
                a('v_lshlrev_b32 v%d, 16, v%d'%(e0,t)); a('v_and_b32 v%d, 0xffff0000, v%d'%(e1,t))
                a('v_add_f32 v%d, v%d, v%d'%(e0,e0,bf+4*nt+2*hh)); a('v_add_f32 v%d, v%d, v%d'%(e1,e1,bf+4*nt+2*hh+1))
                a('v_cvt_pk_bf16_f32 v%d, v%d, v%d'%(t,e0,e1))
                a('v_lshlrev_b32 v%d, 16, v%d'%(e0,t)); a('v_and_b32 v%d, 0xffff0000, v%d'%(e1,t))
                if which==1:
                    a('v_max_f32 v%d, 0, v%d'%(e0,e0)); a('v_max_f32 v%d, 0, v%d'%(e1,e1))
                    a('v_mul_f32 v%d, v%d, v%d'%(e0,e0,e0)); a('v_mul_f32 v%d, v%d, v%d'%(e1,e1,e1))
                else:
                    a('v_lshlrev_b32 v%d, 16, v%d'%(t,hres+2*q+hh)); a('v_and_b32 v%d, 0xffff0000, v%d'%(t2,hres+2*q+hh))
                    a('v_add_f32 v%d, v%d, v%d'%(e0,e0,t)); a('v_add_f32 v%d, v%d, v%d'%(e1,e1,t2))
                a('v_cvt_pk_bf16_f32 v%d, v%d, v%d'%(o+hh,e0,e1))
            a('buffer_store_dwordx2 v[%d:%d], v%d, s[%s], s8 offen offset:%d'%(o,o+1,vo,'40:43' if which==1 else '32:35',32*nt))
            pool.rel(o,2)
    a('s_waitcnt vmcnt(0)'); st(); st.dump()
    a.label('.L%s_end'%tag)
    a('s_endpgm')
    kernels.append((name,a.text(),pool.hi,102))
    launches.append((name,NWG,256,NS*STB))

def emit(path):
    out=[]
    for (k,grid,blk,lds) in launches:
        out.append('; @launch kernel=%s grid=(%d,1,1) block=(%d,1,1) lds=%d'%(k,grid,blk,lds))
    out.append('.amdgcn_target "amdgcn-amd-amdhsa--gfx950"')
    out.append('.text')
    for (k,text,nv,ns) in kernels:
        out.append('.globl %s\n.p2align 8\n.type %s,@function\n%s:'%(k,k,k))
        out.append(text)
    out.append('.p2align 8')
    out.append('.type twiddle_table,@object')
    out.append('twiddle_table:')
    u=np.array(tab,dtype=np.float32).view(np.uint32)
    for n in range(0,len(u),8):
        out.append('.long '+','.join('0x%08x'%v for v in u[n:n+8]))
    out.append('.section .rodata,"a"')
    for (k,text,nv,ns) in kernels:
        nv=max(nv,8)
        out.append('.p2align 6\n.amdhsa_kernel %s'%k)
        out.append('  .amdhsa_next_free_vgpr %d'%nv)
        out.append('  .amdhsa_next_free_sgpr %d'%ns)
        out.append('  .amdhsa_accum_offset %d'%(((nv+3)//4)*4))
        out.append('  .amdhsa_group_segment_fixed_size 0')
        out.append('  .amdhsa_kernarg_size 88')
        out.append('  .amdhsa_user_sgpr_count 2')
        out.append('  .amdhsa_user_sgpr_kernarg_segment_ptr 1')
        out.append('  .amdhsa_system_sgpr_workgroup_id_x 1')
        out.append('  .amdhsa_float_denorm_mode_32 3')
        out.append('  .amdhsa_float_denorm_mode_16_64 3')
        out.append('.end_amdhsa_kernel')
    open(path,'w').write('\n'.join(out)+'\n')

if __name__=='__main__':
    gen_k1()
    gen_k2()
    gen_k3()
    gen_gemm('k4_gemm1_kernel',1)
    gen_gemm('k5_gemm2_kernel',2)
    emit(os.environ.get('OUT','cdna_kernels/%s.s'%NAME))
```
